```python
import torch

def _softmax(x, axis=-1):
    return torch.softmax(x, dim=axis)
def _gelu(x):
    return torch.nn.functional.gelu(x, approximate="tanh")
def _silu(x):
    return torch.nn.functional.silu(x)
def _sigmoid(x):
    return torch.sigmoid(x)
def _layernorm(x, axis=-1, eps=1e-5):
    m = x.mean(dim=axis, keepdim=True)
    v = x.var(dim=axis, keepdim=True, unbiased=False)
    return (x - m) / torch.sqrt(v + eps)
def _scatter_add(tgt, idx, src, axis=0):
    return tgt.clone().index_add_(axis, idx, src)
def _segment_sum(src, seg, n):
    out = torch.zeros((n,) + src.shape[1:], dtype=src.dtype)
    return out.index_add_(0, seg, src)
def _pad(x, pw):
    flat = tuple(v for pair in reversed(pw) for v in pair)
    return torch.nn.functional.pad(x, flat)

kernel_name = 'recurrent_scan__spectral_fnet__mixer_s_mlp__prompt'

def setup_inputs():

    _w = (lambda a: (lambda t: t.to(torch.bfloat16) if t.is_floating_point() else t)(torch.as_tensor(a)))
    def _A_setup():
        B, S, D = 1, 2048, 512
        ns = torch.arange(S)[:, None] * torch.arange(S)[None, :]
        nd = torch.arange(D)[:, None] * torch.arange(D)[None, :]
        Ws_re = torch.cos(-2.0 * torch.pi * ns / S).to(float)
        Ws_im = torch.sin(-2.0 * torch.pi * ns / S).to(float)
        Wd_re = torch.cos(-2.0 * torch.pi * nd / D).to(float)
        Wd_im = torch.sin(-2.0 * torch.pi * nd / D).to(float)
        return {
            "x": _w((lambda *s: torch.randn(*s, dtype=torch.bfloat16) * 0.05)(B, S, D)),
            "dft_seq_re": _w(Ws_re),
            "dft_seq_im": _w(Ws_im),
            "dft_hid_re": _w(Wd_re),
            "dft_hid_im": _w(Wd_im),
        }
    _A_in = _A_setup()

    def _B_setup():
        B, S, D, F = 1, 2048, 512, 1792
        return {
            "x":  _w((lambda *s: torch.randn(*s, dtype=torch.bfloat16) * 0.05)(B, S, D)),
            "w1": _w((lambda *s: torch.randn(*s, dtype=torch.bfloat16) * 3.2)(D, D) * (D ** -0.5)),
            "w2": _w((lambda *s: torch.randn(*s, dtype=torch.bfloat16) * 3.2)(D, D) * (D ** -0.5)),
            "w3": _w((lambda *s: torch.randn(*s, dtype=torch.bfloat16) * 3.2)(D, F) * (D ** -0.5)),
            "w4": _w((lambda *s: torch.randn(*s, dtype=torch.bfloat16) * 1.6)(F, D) * (F ** -0.5)),
        }
    _B_in = _B_setup()

    return {
        "A_x": _A_in["x"],
        "A_dft_seq_re": _A_in["dft_seq_re"],
        "A_dft_seq_im": _A_in["dft_seq_im"],
        "A_dft_hid_re": _A_in["dft_hid_re"],
        "A_dft_hid_im": _A_in["dft_hid_im"],
        "B_x": _B_in["x"],
        "B_w1": _B_in["w1"],
        "B_w2": _B_in["w2"],
        "B_w3": _B_in["w3"],
        "B_w4": _B_in["w4"],
    }

def reference(A_x, A_dft_seq_re, A_dft_seq_im, A_dft_hid_re, A_dft_hid_im, B_x, B_w1, B_w2, B_w3, B_w4):
    def _A_ref(x, dft_seq_re, dft_seq_im, dft_hid_re, dft_hid_im):
        a = torch.einsum("bsd,ed->bse", x, dft_hid_re)
        b = torch.einsum("bsd,ed->bse", x, dft_hid_im)
        y = torch.einsum("ts,bse->bte", dft_seq_re, a) - torch.einsum("ts,bse->bte", dft_seq_im, b)
        return y

    def _B_ref(x, w1, w2, w3, w4):
        B, S, D = x.shape
        h = _gelu(_layernorm(x, axis=-1) @ w1)
        c = D // 4
        g0 = _pad(h[:, :, 0*c:1*c], ((0, 0), (1, 0), (0, 0)))[:, :S, :]
        g1 = _pad(h[:, :, 1*c:2*c], ((0, 0), (0, 1), (0, 0)))[:, 1:, :]
        g2 = _pad(h[:, :, 2*c:3*c], ((0, 0), (2, 0), (0, 0)))[:, :S, :]
        g3 = _pad(h[:, :, 3*c:   ], ((0, 0), (0, 2), (0, 0)))[:, 2:, :]
        hs = torch.concatenate([g0, g1, g2, g3], axis=-1) @ w2
        x1 = x + hs
        h2 = _gelu(_layernorm(x1, axis=-1) @ w3) @ w4
        return x1 + h2

    x = A_x
    xn = _layernorm(x, axis=-1)
    s = _A_ref(xn, A_dft_seq_re, A_dft_seq_im, A_dft_hid_re, A_dft_hid_im)
    g = _silu(_B_ref(xn, B_w1, B_w2, B_w3, B_w4))
    return x + s * g
```

```python
import re

class Ins:
    __slots__ = ("t", "tag", "kind", "wait")
    def __init__(self, t, tag=None, kind=None, wait=None):
        self.t = t; self.tag = tag; self.kind = kind; self.wait = wait
    def __repr__(self): return self.t or str(self.wait)

_reg = re.compile(r"^(-|\|)?(abs\()?([vas])(\d+)\)?$")
_rng = re.compile(r"^(-)?([vas])\[(\d+):(\d+)\]$")

def regs_of(op):
    op = op.strip()
    m = _rng.match(op)
    if m: return {(m.group(2), i) for i in range(int(m.group(3)), int(m.group(4)) + 1)}
    m = _reg.match(op)
    if m: return {(m.group(3), int(m.group(4)))}
    if op == "vcc": return {("s", "vcc")}
    if op == "m0": return {("s", "m0")}
    if op == "exec": return {("s", "exec")}
    return set()

TRANS = ("v_exp_f32", "v_log_f32", "v_rcp_f32", "v_rsq_f32", "v_sqrt_f32", "v_sin_f32", "v_cos_f32")

def parse(t):
    t = t.split(";")[0].strip()
    if not t or t.endswith(":") or t.startswith("."):
        return None
    p = t.split(None, 1)
    op = p[0]
    rest = p[1] if len(p) > 1 else ""
    ops = [o.strip() for o in re.split(r",(?![^\[]*\])", rest)] if rest else []
    if ops:
        last = ops[-1].split()
        ops[-1] = last[0]
        mods = last[1:]
    else:
        mods = []
    R = [regs_of(o) for o in ops]
    U = lambda xs: set().union(*xs) if xs else set()
    if op.startswith("v_mfma"):
        passes = 8 if "32x32" in op else 4
        return (op, "mfma", R[0], U(R[1:]), dict(passes=passes, a=R[1], b=R[2], c=R[3]))
    if op.startswith("buffer_") or op.startswith("global_"):
        if "load" in op:
            if "lds" in mods:
                return (op, "vmem", set(), U(R) | {("s", "m0")}, dict(lds=True))
            return (op, "vmem", R[0], U(R[1:]), {})
        wide = op.endswith("x4") or op.endswith("x3")
        data = R[0] if op.startswith("buffer_") else R[1]
        return (op, "vmem", set(), U(R), dict(store=True, wide=wide, data=data))
    if op.startswith("ds_"):
        if op.startswith("ds_read") or "permute" in op or "swizzle" in op:
            return (op, "ds", R[0], U(R[1:]), {})
        return (op, "ds", set(), U(R), {})
    if op.startswith("v_"):
        ex = {}
        base = re.sub(r"_(e32|e64|dpp|sdwa)$", "", op)
        if base in TRANS: ex["trans"] = True
        if base.startswith("v_dot"): ex["dot"] = base
        if "dpp" in op or any(m.startswith(("row_", "quad_perm")) for m in mods): ex["dpp"] = True
        if base.startswith("v_permlane") or base == "v_swap_b32":
            if base.startswith("v_permlane"): ex["perm"] = True
            return (op, "valu", U(R), U(R), ex)
        if base in ("v_readfirstlane_b32", "v_readlane_b32"):
            ex["rl"] = True
            return (op, "valu", R[0], U(R[1:]), ex)
        if base in ("v_add_co_u32", "v_addc_co_u32", "v_sub_co_u32"):
            return (op, "valu", R[0] | R[1], U(R[2:]), ex)
        src = U(R[1:])
        if base.startswith(("v_fmac", "v_dot2c", "v_pk_fmac")): src = src | R[0]
        if base.startswith("v_dot"): ex["ab"] = U(R[1:3])
        return (op, "valu", R[0], src, ex)
    if op.startswith("s_"):
        if op.startswith(("s_cmp", "s_cbranch", "s_branch", "s_waitcnt", "s_barrier", "s_nop", "s_endpgm", "s_sleep", "s_setprio")):
            return (op, "salu", set(), U(R), {})
        return (op, "salu", R[0] if R else set(), U(R[1:]), {})
    raise ValueError("cannot parse " + t)

def need(prev, cur):
    pop, pc, pd, ps, px = prev
    cop, cc, cd, cs, cx = cur
    n = 0
    isv = lambda S: {r for r in S if r[0] in "va"}
    iss = lambda S: {r for r in S if r[0] == "s"}
    if pc == "valu":
        vd = isv(pd); sd = iss(pd)
        if cc == "mfma" and vd & cs: n = max(n, 3 if "dot" in px else 2)
        if cc == "valu":
            if "trans" in px and vd & cs: n = max(n, 1)
            if ("perm" in cx or "dpp" in cx) and vd & cs: n = max(n, 2)
            if "rl" in cx and vd & cs: n = max(n, 1)
            if sd & cs: n = max(n, 2)
            if "dot" in px and vd & (cs | cd):
                if cx.get("dot") == px["dot"] and not (vd & cx["ab"]): pass
                else: n = max(n, 3)
        if cc in ("vmem", "ds") and "dot" in px and vd & cs: n = max(n, 3)
        if cc == "vmem" and sd & cs: n = max(n, 5)
        if cc == "salu" and sd & cs: n = max(n, 1)
    if pc == "mfma":
        P = px["passes"]
        big = {4: 8, 8: 12}[P]
        if cc == "mfma":
            if pd & (cx["a"] | cx["b"]): n = max(n, big)
            if pd & cx["c"]:
                if not (pd == cx["c"] and cx["passes"] == P): n = max(n, {4: 6, 8: 10}[P])
            elif pd & cd: n = max(n, big)
        elif cc in ("valu", "vmem", "ds"):
            if pd & (cs | cd): n = max(n, big)
            if cc == "valu" and px["c"] & cd: n = max(n, {4: 3, 8: 7}[P])
    if pc == "salu":
        if ("s", "m0") in pd and cc == "vmem" and cx.get("lds"): n = max(n, 1)
    if pc == "vmem" and px.get("store") and px.get("wide"):
        if px["data"] & cd: n = max(n, 2)
    return n

class Prog:
    def __init__(self):
        self.ins = []
        self.ntag = 0
    def __call__(self, t):
        for line in t.split("\n"):
            line = line.strip()
            if line: self.ins.append(Ins(line))
    def tagged(self, t):
        i = Ins(t, tag=object()); self.ins.append(i); return i.tag
    def wait(self, vm=None, lg=None):
        self.ins.append(Ins(None, wait=(vm, lg)))
    def extend(self, other):
        self.ins.extend(other.ins if isinstance(other, Prog) else other)

def weave(main, fill, every=None, after=None, start=0, per=1):
    out = []; k = 0; site = 0; credit = 0.0
    for i in main:
        out.append(i)
        if after(i):
            if site >= start:
                credit += per
                while credit >= 1 - 1e-9 and k < len(fill):
                    out.extend(fill[k]); k += 1; credit -= 1
            site += 1
    while k < len(fill):
        out.extend(fill[k]); k += 1
    return out

is_mfma = lambda i: i.t is not None and i.t.startswith("v_mfma")
is_vmem = lambda i: i.t is not None and i.t.startswith(("buffer_", "global_"))

def finalize(ins):
    vm = []; lg = []
    lines = []
    seen = set()
    for i in ins:
        if i.tag is not None: seen.add(id(i.tag))
        if i.wait is not None:
            w, l = i.wait
            for z in (w, l):
                assert z is None or z == 0 or id(z) in seen, "wait on an op that was not issued yet"
            parts = []
            if w is not None:
                if w == 0: n = 0
                elif w in vm: n = len(vm) - 1 - vm.index(w)
                else: n = None
                if n is not None and (n < len(vm)):
                    n = min(n, 63)
                    parts.append("vmcnt(%d)" % n); vm = vm[len(vm) - n:] if n else []
            if l is not None:
                if l == 0: n = 0
                elif l in lg: n = len(lg) - 1 - lg.index(l)
                else: n = None
                if n is not None and (n < len(lg)):
                    n = min(n, 15)
                    parts.append("lgkmcnt(%d)" % n); lg = lg[len(lg) - n:] if n else []
            if parts: lines.append("s_waitcnt " + " ".join(parts))
            continue
        t = i.t
        if t.startswith(("buffer_", "global_")): vm.append(i.tag)
        elif t.startswith("ds_"): lg.append(i.tag)
        elif t.startswith("s_waitcnt"):
            if "vmcnt(0)" in t: vm = []
            if "lgkmcnt(0)" in t: lg = []
        lines.append(t)
    out = []; hist = []
    nops = 0
    for t in lines:
        p = parse(t)
        if p is None:
            out.append(t); continue
        req = 0
        dist = 0
        for q, w in reversed(hist):
            r = need(q, p) - dist
            if r > req: req = r
            dist += w
            if dist >= 12: break
        if req > 0:
            out.append("s_nop %d" % (req - 1)); hist.append((parse("s_nop 0"), req)); nops += 1
        out.append(t)
        w = 1
        if p[0] == "s_nop": w = int(t.split()[1]) + 1
        hist.append((p, w))
        if len(hist) > 24: hist = hist[-24:]
    return out, nops
```

```python
import sys, struct, math
from asmlib import *

NAME = "recurrent_scan__spectral_fnet__mixer_s_mlp__prompt"
STAMP = "--stamp" in sys.argv
OUT = [a for a in sys.argv[1:] if not a.startswith("--")][0]

def f2h(x): return "0x%08x" % struct.unpack("<I", struct.pack("<f", x))[0]
def v(a, n=1): return "v%d" % a if n == 1 else "v[%d:%d]" % (a, a + n - 1)
def a(x, n=1): return "a%d" % x if n == 1 else "a[%d:%d]" % (x, x + n - 1)
def R(r, n=1): return v(r[1], n) if r[0] == "v" else a(r[1], n)

WS_E = 0
WS_FLAG = 0x10000
WS_S2 = 0x40000
WS_STAMP = 0x80000
WS_A2 = 0x200000
WS_A3 = 0x400000
WS_U = 0x600000
WS_H = 0x800000
OOB = 0x7f000000
L_B12 = 0
L_X = 65536
L_B3 = 49152
L_ST = 149504
L_FIN = L_ST + 2048
L_Z = L_FIN + 1024
LDS_BYTES = 163840
SX, SW1, SW2, SW3, SW4, SO, SWS = "s[8:11]", "s[12:15]", "s[16:19]", "s[20:23]", "s[24:27]", "s[28:31]", "s[32:35]"
sB, sJ, sW, sMH, sNH, sM, sPG, sONE, sCNT, sCU = "s36", "s37", "s38", "s39", "s40", "s41", "s42", "s43", "s44", "s45"
sT0, sT1, sT2, sT3, sT4, sT5 = "s46", "s47", "s48", "s49", "s50", "s51"
sOFF = "s52"; sHB3 = "s53"; sFD = "s54"; sNEG = "s55"; sFSL = "s56"; sR3 = "s57"; sK4 = "s58"
def C(k): return "0" if k == 0 else "s%d" % (63 + k)
STAMP_S = 80
vL = 0; vW = 2; vTAG = 6; vPOLL = 7; vX1 = 8
K0 = -2.0 * math.log2(math.e) * math.sqrt(2.0 / math.pi)
K1 = K0 * 0.044715
EPS = 1e-5

P = Prog()
nstamp = [0]
def stamp(p):
    if STAMP:
        k = nstamp[0]; nstamp[0] += 1
        p("s_memrealtime s[%d:%d]" % (4, 5))
        p("s_waitcnt lgkmcnt(0)")
        p("s_mov_b32 s%d, s4" % (STAMP_S + k))
lab = [0]
def spin(p, vaddr, first=None):
    lab[0] += 1
    L = "L_spin%d" % lab[0]
    if first is not None:
        p.wait(vm=first)
        p("v_cmp_ne_u32 vcc, %s, %s" % (v(vPOLL), v(vTAG)))
        p("s_nop 1")
        p("s_cbranch_vccz %s_done" % L)
    p("%s:" % L)
    q = Ins("buffer_load_dword %s, %s, %s, 0 offen sc1" % (v(vPOLL), v(vaddr), SWS))
    if first is None:
        p.ins.append(q)
        p("s_waitcnt vmcnt(0)")
    else:
        p.ins.append(Ins("/*rare*/ " + q.t)); p.ins.append(Ins("/*rare*/ s_waitcnt vmcnt(0)"))
    p("v_cmp_ne_u32 vcc, %s, %s" % (v(vPOLL), v(vTAG)))
    p("s_sub_u32 %s, %s, 1" % (sCNT, sCNT))
    p("s_cbranch_scc1 %s_done" % L)
    p("s_cbranch_vccnz %s" % L)
    p("%s_done:" % L)

def flag_store(p, kind, sidx, vtmp):
    lab[0] += 1
    p("buffer_store_dword %s, %s, %s, %s offen sc1" % (v(vTAG), v(vtmp), SWS, sidx))

P("s_cmp_ge_u32 s2, 0x100")
P("s_cbranch_scc1 L_end")
for s, off in ((12, 48), (8, 0), (32, 96), (16, 56), (20, 64), (24, 72), (28, 80)):
    P("s_load_dwordx2 s[%d:%d], s[0:1], %d" % (s, s + 1, off))
if STAMP:
    P("s_memrealtime s[6:7]")
P("s_getpc_b64 s[4:5]")
P("L_pc:")
P("s_lshr_b32 s3, s2, 3")
P("s_lshl_b32 %s, s3, 11" % sT0)
P("s_add_u32 s4, s4, %s" % sT0)
P("s_addc_u32 s5, s5, 0")
P("v_lshlrev_b32 v16, 3, v0")
P("v_mov_b32 v17, s5")
P("v_add_co_u32 v16, vcc, s4, v16")
P("v_lshrrev_b32 v1, 6, v0")
P("v_and_b32 v0, 63, v0")
P("v_addc_co_u32 v17, vcc, 0, v17, vcc")
P("v_readfirstlane_b32 %s, v1" % sW)
P("global_load_dwordx2 v[30:31], v[16:17], off")
P("s_and_b32 %s, s3, 7" % sJ)
P("s_and_b32 %s, s3, 15" % sM)
P("s_lshr_b32 %s, s3, 3" % sT0)
P("s_and_b32 %s, s2, 7" % sT1)
P("s_lshl_b32 %s, %s, 2" % (sT1, sT1))
P("s_add_u32 %s, %s, %s" % (sB, sT0, sT1))
P("s_lshr_b32 %s, %s, 1" % (sPG, sB))
P("s_lshr_b32 %s, %s, 1" % (sMH, sW))
P("s_and_b32 %s, %s, 1" % (sNH, sW))
P("s_lshl_b32 %s, %s, 3" % (sCU, sB))
P("s_add_u32 %s, %s, %s" % (sCU, sCU, sJ))
for s, n in ((12, 512 * 1024), (8, 2048 * 1024), (32, 1 << 28), (16, 512 * 1024), (20, 512 * 3584), (24, 1792 * 1024), (28, 2048 * 1024)):
    P("s_mov_b32 s%d, 0x%x" % (s + 2, n))
    P("s_mov_b32 s%d, 0x20000" % (s + 3))
P("v_lshrrev_b32 v16, 3, v0")
P("v_and_b32 v17, 2, v16")
P("v_bfe_u32 v18, v0, 5, 1")
P("v_or_b32 v17, v17, v18")
P("v_lshlrev_b32 v17, 1, v17")
P("v_and_b32 v19, 7, v0")
P("v_xor_b32 v17, v17, v19")
P("v_lshlrev_b32 v17, 4, v17")
P("v_lshl_add_u32 v17, v16, 10, v17")
P("s_lshl_b32 %s, %s, 7" % (sT0, sJ))
P("v_add_u32 %s, %s, v17" % (v(vW), sT0))
for i in range(1, 4):
    P("v_add_u32 %s, %d, %s" % (v(vW + i), 7168 * i, v(vW)))
P("s_lshl_b32 %s, %s, 4" % (sT0, sNH))
P("v_add_u32 v22, %s, v16" % sT0)
P("s_lshl_b32 %s, %s, 5" % (sT1, sMH))
P("s_add_u32 %s, %s, %s" % (sT1, sT1, sB))
P("s_lshl_b32 %s, %s, 10" % (sT2, sT1))
P("v_lshlrev_b32 v22, 16, v22")
P("v_add_u32 v22, %s, v22" % sT2)
P("v_lshrrev_b32 v23, 1, v16")
P("v_xor_b32 v23, v23, v19")
P("v_lshl_add_u32 v20, v23, 4, v22")
P("v_xor_b32 v21, 64, v20")
P("v_add_u32 v21, %d, v21" % (8 * 65536 - 1024))
P("s_lshl_b32 %s, %s, 15" % (sOFF, sW))
P("s_lshl_b32 m0, %s, 12" % sW)
P("s_waitcnt lgkmcnt(0)")
if STAMP:
    P("s_mov_b32 s%d, s6" % (STAMP_S + 0)); nstamp[0] = 1

def w_dma_round(srd, r, first_setup=True):
    g = []
    for i in range(4):
        q = Prog()
        t = q.tagged("buffer_load_dwordx4 %s, %s, %s offen offset:%d lds" % (v(vW + i), srd, sOFF, 1024 * i))
        if i == 3 and r < 3:
            q("s_add_u32 %s, %s, 0x20000" % (sOFF, sOFF))
            q("s_add_u32 m0, m0, 0x4000")
        g.append(q.ins)
    return g, t

dma = []; tB1 = []; tX = []
for r in range(4):
    g, t = w_dma_round(SW1, r); dma += g; tB1.append(t)
for kc in range(8):
    q = Prog()
    if kc == 0:
        q("s_lshl_b32 %s, %s, 11" % (sT0, sW))
        q("s_add_u32 m0, %s, %d" % (sT0, L_X))
    else:
        q("s_add_u32 m0, m0, %d" % (8192 - 128))
    q("buffer_load_dwordx4 v20, %s, 0 offen offset:%d lds" % (SX, kc * 128))
    dma.append(q.ins)
    q = Prog()
    t = q.tagged("buffer_load_dwordx4 v21, %s, 0 offen offset:%d lds" % (SX, kc * 128 + 1024))
    dma.append(q.ins); tX.append(t)

BD = 64
S = Prog()
S("v_and_b32 v22, 31, v0")
S("s_lshl_b32 %s, %s, 5" % (sT3, sJ))
S("v_add_u32 v22, %s, v22" % sT3)
S("v_mov_b32 v23, 0x100")
S("v_cmp_eq_u32 vcc, 0, v22")
S("v_cvt_f32_u32 v25, v18")
S("s_mul_i32 %s, %s, 0x3e800000" % (sT3, sNH))
S("v_cndmask_b32 v22, v22, v23, vcc")
S("v_cvt_f32_u32 v24, v22")
S("v_mul_f32 v24, %s, v24" % f2h(1.0 / 512))
S("v_mul_f32 v25, 0x41000000, v25")
S("v_fma_f32 v26, v25, v24, %s" % sT3)
S("v_add_f32 v27, v26, v24")
S("v_mul_f32 v25, %s, v24" % f2h(10.0))
S("v_add_f32 v24, v24, v24")
trig = [[i] for i in S.ins]
for s in range(16):
    for k in range(4):
        q = Prog()
        q("v_cos_f32 v28, v26"); q("v_cos_f32 v29, v27")
        d = "v25" if k == 3 else "v24"
        q("v_add_f32 v26, v26, %s" % d); q("v_add_f32 v27, v27, %s" % d)
        q("v_cvt_pk_bf16_f32 %s, v28, v29" % v(BD + 4 * s + k))
        trig.append(q.ins)
main = []
for g in dma: main += g
body = weave(main, [sum(trig[:15], [])] + trig[15:], after=is_vmem, start=6, per=2)
P.extend(body)
P("v_lshrrev_b32 v22, 4, v0")
P("v_lshlrev_b32 v22, 15, v22")
P("v_and_b32 v23, 15, v0")
P("v_lshl_add_u32 v22, v23, 7, v22")
P("s_lshl_b32 %s, %s, 11" % (sT0, sPG))
P("s_add_u32 %s, %s, %d" % (sT0, sT0, WS_FLAG))
P("v_mov_b32 v23, 0")
tE = P.tagged("buffer_load_dword %s, v23, %s, 0 offen sc1" % (v(vTAG), SWS))
P("buffer_load_dword %s, v22, %s, %s offen sc1" % (v(vPOLL), SWS, sT0))
for k in range(1, 17):
    P("s_mov_b32 %s, %d" % (C(k), 4096 * k))
P("s_mov_b32 %s, 0x3f803f80" % sONE)
P("s_mov_b32 %s, 0x80008000" % sNEG)
P("s_mov_b32 %s, 0x40000" % sCNT)
def tr32_bases(p, d0, tmp, nh_sgpr):
    t0, t1, t2 = tmp, tmp + 1, tmp + 2
    p("v_bfe_u32 %s, v0, 2, 2" % v(t0))
    p("v_bfe_u32 %s, v0, 5, 1" % v(t1))
    p("v_lshl_add_u32 %s, %s, 3, %s" % (v(t1), v(t1), v(t0)))
    p("v_bfe_u32 %s, v0, 4, 1" % v(t2))
    p("v_and_b32 %s, 2, %s" % (v(t0), v(t0)))
    p("v_xor_b32 %s, %s, %s" % (v(t2), v(t2), v(t0)))
    if nh_sgpr is not None:
        p("s_lshl_b32 %s, %s, 1" % (sT5, nh_sgpr))
        p("v_xor_b32 %s, %s, %s" % (v(t2), sT5, v(t2)))
    p("v_lshlrev_b32 %s, 5, %s" % (v(t2), v(t2)))
    p("v_and_b32 %s, 3, v0" % v(t0))
    p("v_lshl_add_u32 %s, %s, 3, %s" % (v(t2), v(t0), v(t2)))
    p("v_lshl_add_u32 %s, %s, 7, %s" % (v(d0), v(t1), v(t2)))
    p("v_xor_b32 %s, 32, %s" % (v(d0 + 1), v(d0)))
    p("v_add_u32 %s, 512, %s" % (v(d0 + 1), v(d0 + 1)))
tr32_bases(P, 16, 22, sNH)
P("v_and_b32 v22, 31, v0")
P("v_bfe_u32 v23, v0, 1, 3")
P("v_bfe_u32 v24, v0, 5, 1")
P("v_xor_b32 v23, v23, v24")
P("v_lshlrev_b32 v23, 4, v23")
P("v_lshl_add_u32 v23, v22, 7, v23")
P("s_lshl_b32 %s, %s, 12" % (sT0, sMH))
P("s_add_u32 %s, %s, %d" % (sT0, sT0, L_X))
P("v_add_u32 v18, %s, v23" % sT0)
for i in range(1, 4):
    P("v_xor_b32 %s, %d, v18" % (v(18 + i), 32 * i))
aONE = 152
for i in range(4):
    P("v_accvgpr_write_b32 %s, %s" % (a(aONE + i), sONE))
P("v_and_b32 v22, 15, v0")
P("s_lshl_b32 %s, %s, 4" % (sT0, sW))
P("v_add_u32 v22, %s, v22" % sT0)
P("v_cvt_f32_u32 v22, v22")
P("v_bfe_u32 v23, v0, 5, 1")
P("v_bfe_u32 v24, v0, 4, 1")
P("v_lshlrev_b32 v23, 10, v23")
P("v_lshl_add_u32 v23, v24, 8, v23")
P("v_add_u32 v23, %s, v23" % sB)
P("v_cvt_f32_u32 v23, v23")
P("v_mul_f32 v23, v23, v22")
P("v_mul_f32 v23, %s, v23" % f2h(1.0 / 2048))
P("v_mul_f32 v22, %s, v22" % f2h(1.0 / 32))
stamp(P)
CS1, ACC1, XF = 32, 48, 128
aFC, aFN, aFP = 128, 136, 144
ftrig = []
for mh2 in range(2):
    for k in range(4):
        i0 = 2 * k
        kk = [((i & 3) + 8 * (i >> 2) + 0.5 * mh2) for i in (i0, i0 + 1)]
        g = lambda *t: [Ins(x) for x in t]
        ftrig.append(g("v_fmamk_f32 v24, v22, %s, v23" % f2h(kk[0]), "v_fmamk_f32 v25, v22, %s, v23" % f2h(kk[1]), "v_cos_f32 v26, v24"))
        ftrig.append(g("v_cos_f32 v27, v25", "v_sin_f32 v28, v24"))
        ftrig.append(g("v_sin_f32 v29, v25", "v_cvt_pk_bf16_f32 v26, v26, v27", "v_cvt_pk_bf16_f32 v28, v28, v29"))
        ftrig.append(g("v_accvgpr_write_b32 %s, v26" % a(aFC + 4 * mh2 + k), "v_xor_b32 v27, %s, v28" % sNEG,
                       "v_accvgpr_write_b32 %s, v28" % a(aFP + 4 * mh2 + k), "v_accvgpr_write_b32 %s, v27" % a(aFN + 4 * mh2 + k)))
M = Prog()
for r in range(4):
    M.wait(vm=tB1[r]); M("s_barrier")
    tg = []
    for s in range(8 * r, 8 * r + 8):
        M("ds_read_b64_tr_b16 %s, v16 offset:%d" % (a(4 * s, 2), 2048 * s))
        tg.append(M.tagged("ds_read_b64_tr_b16 %s, v17 offset:%d" % (a(4 * s + 2, 2), 2048 * s)))
    for n, s in enumerate(range(8 * r, 8 * r + 8)):
        M.wait(lg=tg[n])
        M("v_mfma_f32_32x32x16_bf16 %s, %s, %s, %s" % (v(CS1, 16), a(4 * s, 4), a(aONE, 4), "0" if s == 0 else v(CS1, 16)))
P.extend(weave(M.ins, ftrig, after=is_mfma))
stamp(P)
P("s_lshl_b32 %s, %s, 15" % (sOFF, sW))
P("s_lshl_b32 m0, %s, 12" % sW)
P("v_mov_b32 v24, 0"); P("v_mov_b32 v25, 0"); P("v_mov_b32 v26, 0"); P("v_mov_b32 v27, 0")
b2 = []; tB2 = None
for r in range(4):
    g, tB2 = w_dma_round(SW2, r); b2 += g
P("v_and_b32 v22, 31, v0")
P("v_bfe_u32 v23, v0, 5, 1")
P("s_lshl_b32 %s, %s, 10" % (sT0, sMH))
P("s_add_u32 %s, %s, %d" % (sT0, sT0, L_ST))
P("v_lshl_add_u32 v29, v22, 5, %s" % sT0)
P("s_lshl_b32 %s, %s, 4" % (sT0, sNH))
P("v_lshl_add_u32 v28, v23, 3, v29")
P("v_add_u32 v28, %s, v28" % sT0)
P("v_and_b32 v22, 15, v0")
P("v_bfe_u32 v30, v0, 1, 3")
P("v_xor_b32 v30, v30, v23")
P("v_lshlrev_b32 v30, 4, v30")
P("v_lshl_add_u32 v30, v22, 7, v30")
P("v_bfe_u32 v31, v0, 4, 1")
P("v_lshl_add_u32 v30, v31, 3, v30")
P("s_lshl_b32 %s, %s, 11" % (sT0, sW))
P("s_lshl_b32 %s, %s, 13" % (sT1, sJ))
P("s_add_u32 %s, %s, %s" % (sT0, sT0, sT1))
P("s_add_u32 %s, %s, %d" % (sT0, sT0, L_X))
P("v_add_u32 v30, %s, v30" % sT0)
P("s_cmp_eq_u32 %s, 0" % sNH)
aRES = 156
M = Prog()
def stats_block(p, c):
    lab[0] += 1
    L = "L_st%d" % lab[0]
    p("s_cmp_eq_u32 %s, 0" % sNH)
    p("s_cbranch_scc1 %s_a" % L)
    for par in (1, 0):
        for s in range(8 * c + 4 * par, 8 * c + 4 * par + 4):
            for k in range(4):
                x = v(XF + 4 * s + k)
                p("v_dot2c_f32_bf16 %s, %s, %s" % (v(24 + 2 * (k & 1)), sONE, x))
                p("v_dot2c_f32_bf16 %s, %s, %s" % (v(25 + 2 * (k & 1)), x, x))
        if par == 1:
            p("s_branch %s_b" % L); p("%s_a:" % L)
    p("%s_b:" % L)
    p("s_nop 2")
for c in range(4):
    M.wait(vm=tX[2 * c + 1], lg=0 if c == 0 else None); M("s_barrier")
    tg = []
    for s in range(8 * c, 8 * c + 8):
        tg.append(M.tagged("ds_read_b128 %s, %s offset:%d" % (v(XF + 4 * s, 4), v(18 + (s & 3)), 8192 * (s >> 2))))
    if c == 3:
        for T in range(4):
            if T: M("v_xor_b32 v31, %d, v30" % (32 * T))
            M("ds_read_b64 %s, %s" % (a(aRES + 2 * T, 2), "v31" if T else "v30"))
        M.wait(lg=tg[-1])
        stats_block(M, c)
        M("v_pk_add_f32 v[24:25], v[24:25], v[26:27]")
        M("ds_write_b64 v28, v[24:25]")
    for n, s in enumerate(range(8 * c, 8 * c + 8)):
        M.wait(lg=tg[n])
        M("v_mfma_f32_32x32x16_bf16 %s, %s, %s, %s" % (v(ACC1, 16), a(4 * s, 4), v(XF + 4 * s, 4), "0" if s == 0 else v(ACC1, 16)))
    if c < 3:
        stats_block(M, c)
P.extend(weave(M.ins, b2, after=is_mfma, per=0.75))
P.wait(lg=0)
P("s_barrier")
P("ds_read_b128 v[16:19], v29")
P("ds_read_b128 v[20:23], v29 offset:16")
P("s_lshr_b32 %s, %s, 1" % (sT0, sJ))
P("s_lshr_b32 %s, %s, 1" % (sT1, sT0))
P("s_add_u32 %s, %s, 1" % (sT1, sT1))
P("s_sub_u32 %s, 0, %s" % (sT2, sT1))
P("s_and_b32 %s, %s, 1" % (sT0, sT0))
P("s_cselect_b32 %s, %s, %s" % (sT1, sT2, sT1))
P("s_add_u32 %s, %s, %s" % (sT2, sB, sT1))
P("s_and_b32 %s, %s, 31" % (sFD, sT2))
P("s_lshl_b32 %s, %s, 3" % (sFD, sFD))
P("s_add_u32 %s, %s, %s" % (sFD, sFD, sJ))
P("s_lshl_b32 %s, %s, 7" % (sFD, sFD))
P("s_lshl_b32 %s, %s, 5" % (sT3, sMH))
P("s_add_u32 %s, %s, %s" % (sT2, sT2, sT3))
P("s_ashr_i32 %s, %s, 6" % (sT3, sT2))
P("s_and_b32 %s, %s, 63" % (sT2, sT2))
P("s_lshl_b32 %s, %s, 15" % (sT2, sT2))
P("s_lshl_b32 %s, %s, 12" % (sT4, sJ))
P("s_add_u32 %s, %s, %s" % (sT2, sT2, sT4))
P("s_lshl_b32 %s, %s, 11" % (sT4, sNH))
P("s_add_u32 %s, %s, %s" % (sT2, sT2, sT4))
P("s_add_u32 %s, %s, %d" % (sT2, sT2, WS_A2))
P("v_and_b32 v26, 31, v0")
P("v_add_u32 v26, %s, v26" % sT3)
P("v_cmp_gt_u32 vcc, 32, v26")
P("v_and_b32 v26, 31, v26")
P("v_and_b32 v28, 32, v0")
P("v_add_u32 v28, v28, v26")
P("v_cndmask_b32 v27, 0, -1, vcc")
P("v_lshl_add_u32 v28, v28, 4, %s" % sT2)
P.wait(lg=0)
P("v_pk_add_f32 v[16:17], v[16:17], v[18:19]")
P("v_pk_add_f32 v[20:21], v[20:21], v[22:23]")
P("v_pk_add_f32 v[16:17], v[16:17], v[20:21]")
P("v_mul_f32 v16, %s, v16" % f2h(-1.0 / 512))
P("v_mul_f32 v17, %s, v17" % f2h(1.0 / 512))
P("v_fma_f32 v17, -v16, v16, v17")
P("v_max_f32 v17, 0, v17")
P("v_add_f32 v18, %s, v17" % f2h(EPS))
P("v_rsq_f32 v20, v18")
P("v_rcp_f32 v19, v18")
P("v_pk_fma_f32 %s, %s, v[16:17], %s op_sel_hi:[1,0,1]" % (v(ACC1, 2), v(CS1, 2), v(ACC1, 2)))
P("v_fmaak_f32 v19, v19, v17, %s" % f2h(EPS))
P("v_mul_f32 v21, v16, v20")
P("v_mul_f32 v18, v18, v19")
P("v_rsq_f32 v19, v18")
P("v_sqrt_f32 v17, v18")
P("v_pk_fma_f32 %s, %s, v[16:17], %s op_sel_hi:[1,0,1]" % (v(ACC1 + 2, 2), v(CS1 + 2, 2), v(ACC1 + 2, 2)))
P("v_mul_f32 v18, v19, v19")
P("v_mul_f32 v23, %s, v19" % f2h(K0))
P("v_mul_f32 v18, v18, v19")
P("v_mul_f32 v22, %s, v18" % f2h(K1))
for k in range(2, 8):
    P("v_pk_fma_f32 %s, %s, v[16:17], %s op_sel_hi:[1,0,1]" % (v(ACC1 + 2 * k, 2), v(CS1 + 2 * k, 2), v(ACC1 + 2 * k, 2)))

def gelu_pairs(p, pairs, cc, iv):
    for z, t, d in pairs: p("v_pk_mul_f32 %s, %s, %s" % (v(t, 2), v(z, 2), v(z, 2)))
    for z, t, d in pairs: p("v_pk_fma_f32 %s, %s, %s, %s op_sel:[0,0,1] op_sel_hi:[1,0,1]" % (v(t, 2), v(t, 2), v(cc, 2), v(cc, 2)))
    for z, t, d in pairs: p("v_pk_mul_f32 %s, %s, %s" % (v(t, 2), v(t, 2), v(z, 2)))
    for z, t, d in pairs: p("v_exp_f32 %s, %s" % (v(t), v(t))); p("v_exp_f32 %s, %s" % (v(t + 1), v(t + 1)))
    for z, t, d in pairs: p("v_pk_fma_f32 %s, %s, %s, %s op_sel:[0,1,1] op_sel_hi:[1,1,1]" % (v(t, 2), v(t, 2), v(iv, 2), v(iv, 2)))
    for z, t, d in pairs: p("v_rcp_f32 %s, %s" % (v(t), v(t))); p("v_rcp_f32 %s, %s" % (v(t + 1), v(t + 1)))
    for z, t, d in pairs: p("v_pk_mul_f32 %s, %s, %s" % (v(t, 2), v(t, 2), v(z, 2)))
    for z, t, d in pairs: p("v_cvt_pk_bf16_f32 %s, %s, %s" % (v(d), v(t), v(t + 1)))

tH = None
for u in range(2):
    prs = []
    for n, g in enumerate((u, u + 2)):
        for k in range(2):
            prs.append((ACC1 + 4 * g + 2 * k, CS1 + 4 * g + 2 * k, 8 + 4 * u + 2 * n + k))
    gelu_pairs(P, prs, 22, 16)
    for k in range(4): P("v_and_b32 %s, v27, %s" % (v(8 + 4 * u + k), v(8 + 4 * u + k)))
    tH = P.tagged("buffer_store_dwordx4 %s, v28, %s, 0 offen offset:%d sc1" % (v(8 + 4 * u, 4), SWS, 1024 * u))
stamp(P)
P("v_cmp_gt_u32 vcc, 32, v0")
P("s_lshl_b32 %s, %s, 8" % (sT0, sW))
P("s_add_u32 %s, %s, %d" % (sT0, sT0, L_FIN))
P("v_lshl_add_u32 v29, v0, 2, %s" % sT0)
P("v_cndmask_b32 v20, v21, v20, vcc")
P("ds_write_b32 v29, v20")
ZA, ZB = 32, 48
vB3 = 16
fill = []
q = Prog()
q("s_mul_i32 %s, %s, 224" % (sT1, sM))
q("s_mov_b32 %s, 0x%x" % (sT2, 4682))
fill.append(q.ins)
for i in range(7):
    q = Prog()
    q("v_add_u32 v24, %d, v0" % (64 * i))
    q("v_mul_u32_u24 v25, %s, v24" % sT2)
    q("v_lshrrev_b32 v25, 16, v25")
    q("v_mul_u32_u24 v25, %d, v25" % (3584 - 224))
    q("v_lshl_add_u32 v25, v24, 4, v25")
    q("v_add_u32 %s, %s, v25" % (v(vB3 + i), sT1))
    if i & 3: q("v_subrev_u32 %s, %d, %s" % (v(vB3 + i), 1024 * (i & 3), v(vB3 + i)))
    fill.append(q.ins)
def b3_round(gexpr):
    gs = []
    for i in range(7):
        q = Prog()
        if i == 0:
            for e in gexpr: q(e)
            q("s_mul_i32 %s, %s, 114688" % (sOFF, sT3))
            q("s_mul_i32 %s, %s, 7168" % (sT3, sT3))
            q("s_add_u32 m0, %s, %d" % (sT3, L_B3))
        if i == 4: q("s_add_u32 m0, m0, 4096")
        t = q.tagged("buffer_load_dwordx4 %s, %s, %s offen offset:%d lds" % (v(vB3 + i), SW3, sOFF, 1024 * (i & 3)))
        gs.append(q.ins)
    return gs, t
for r in range(2):
    g, t = b3_round(["s_add_u32 %s, %s, %d" % (sT3, sW, 3 + 4 * r)]); fill += g
M = Prog()
for s in range(32):
    acc = ZA if (s & 1) == 0 else ZB
    ss = (s >> 1) + 16 * (s & 1)
    M("v_mfma_f32_32x32x16_bf16 %s, %s, %s, %s" % (v(acc, 16), v(XF + 4 * ss, 4), v(BD + 4 * (s >> 1), 4), "0" if s < 2 else v(acc, 16)))
P.extend(weave(M.ins, fill, after=is_mfma, per=0.75))
P("v_or_b32 v24, %s, v0" % sW)
P("v_mov_b32 v25, 0x%x" % OOB)
P("v_cmp_eq_u32 vcc, 0, v24")
P("v_mov_b32 v24, %d" % WS_FLAG)
P.wait(vm=tE)
P("v_add_u32 %s, 0x9e3779b9, %s" % (v(vTAG), v(vTAG)))
P("v_cndmask_b32 v1, v25, v24, vcc")
P.wait(vm=tH)
P("s_barrier")
flag_store(P, 0, sFD, 1)
stamp(P)
P("v_bfe_u32 v24, v0, 5, 1")
P("v_lshl_add_u32 v25, v24, 4, %s" % sT0)
for g in range(4):
    P("ds_read_b128 %s, v25 offset:%d" % (v(96 + 4 * g, 4), 32 * g))
P("v_and_b32 v26, 15, v0")
P("s_lshl_b32 %s, %s, 6" % (sT1, sNH))
P("s_add_u32 %s, %s, %s" % (sT1, sT1, sT0))
P("v_lshl_add_u32 v26, v26, 2, %s" % sT1)
tFin = P.tagged("ds_read2_b32 v[30:31], v26 offset0:0 offset1:32")
P("v_lshlrev_b32 v26, 31, v0")
P("v_or_b32 v26, 1.0, v26")
P("v_and_b32 v27, 1, v0")
P("v_lshlrev_b32 v27, 10, v27")
P("v_lshl_add_u32 v27, v24, 8, v27")
P("v_bfe_u32 v28, v0, 1, 4")
P("v_lshl_add_u32 v27, v28, 4, v27")
P("s_lshl_b32 %s, %s, 12" % (sT1, sNH))
P("s_lshl_b32 %s, %s, 11" % (sT2, sMH))
P("s_add_u32 %s, %s, %s" % (sT1, sT1, sT2))
P("s_add_u32 %s, %s, %d" % (sT1, sT1, L_Z))
P("v_add_u32 v27, %s, v27" % sT1)
for k in range(8):
    P("v_pk_fma_f32 %s, %s, v[26:27], %s op_sel_hi:[1,0,1]" % (v(ZA + 2 * k, 2), v(ZB + 2 * k, 2), v(ZA + 2 * k, 2)))
P.wait(lg=tFin)
for k in range(8):
    P("v_pk_mul_f32 %s, %s, %s" % (v(ZA + 2 * k, 2), v(ZA + 2 * k, 2), v(96 + 2 * k, 2)))
for k in range(8):
    P("v_cvt_pk_bf16_f32 %s, %s, %s" % (v(ZB + k), v(ZA + 2 * k), v(ZA + 2 * k + 1)))
P("ds_write_b128 v27, %s" % v(ZB, 4))
P("ds_write_b128 v27, %s offset:512" % v(ZB + 4, 4))
P("v_bfe_u32 v24, v0, 2, 4")
P("v_and_b32 v25, 2, v24")
P("v_bfe_u32 v28, v0, 4, 1")
P("v_or_b32 v25, v25, v28")
P("v_lshlrev_b32 v25, 5, v25")
P("v_and_b32 v28, 3, v0")
P("v_lshl_add_u32 v25, v28, 3, v25")
P("v_lshl_add_u32 v112, v24, 7, v25")
for T in range(1, 4): P("v_xor_b32 %s, %d, v112" % (v(112 + T), 32 * T))
P("v_lshlrev_b32 v29, 4, v0")
P("v_add_u32 v28, %d, v29" % L_Z)
P.wait(lg=0)
P("s_barrier")
def B2F(ks, T):
    n = 4 * ks + T
    return ("a", 4 * n) if n < 32 else ("v", 128 + 4 * (n - 32))
b2r = []; tB2r = {}
for ks in range(16):
    for T in range(4):
        r = B2F(ks, T)
        q = Prog()
        q("ds_read_b64_tr_b16 %s, %s offset:%d" % (R(r, 2), v(112 + T), 4096 * ks))
        tB2r[ks, T] = q.tagged("ds_read_b64_tr_b16 %s, %s offset:%d" % (R((r[0], r[1] + 2), 2), v(112 + T), 4096 * ks + 2048))
        b2r.append(q.ins)
ZF, UA = 64, 96
tz = []
for f in range(8):
    tz.append(P.tagged("ds_read_b128 %s, v28 offset:%d" % (v(ZF + 4 * f, 4), 1024 * f)))
P("v_lshrrev_b32 v24, 4, v0")
P("v_and_b32 v25, 15, v0")
P("v_lshlrev_b32 v24, 17, v24")
P("v_lshl_add_u32 v27, v25, 3, v24")
P("s_lshl_b32 %s, %s, 19" % (sT1, sW))
P("s_lshl_b32 %s, %s, 7" % (sT2, sCU))
P("s_add_u32 %s, %s, %s" % (sT1, sT1, sT2))
P("s_add_u32 %s, %s, %d" % (sT1, sT1, WS_U))
P("v_add_u32 v27, %s, v27" % sT1)
P.wait(lg=tz[-1])
M = Prog()
for step in range(4):
    ab, mh2 = step >> 1, step & 1
    for par in range(2):
        for im in range(2):
            Fr = (aFC if ab == im else (aFP if ab == 1 else aFN)) + 4 * mh2
            acc = UA + 8 * par + 4 * im
            M("v_mfma_f32_16x16x32_bf16 %s, %s, %s, %s" % (v(acc, 4), a(Fr, 4), v(ZF + 4 * (4 * ab + 2 * mh2 + par), 4), "0" if step == 0 else v(acc, 4)))
P.extend(weave(M.ins, b2r[:16], after=is_mfma))
ACC2 = 32
for T in range(4):
    for k in range(2):
        P("v_accvgpr_read_b32 v24, %s" % a(aRES + 2 * T + k))
        P("v_and_b32 %s, 0xffff0000, v24" % v(ACC2 + 4 * T + 2 * k + 1))
        P("v_lshlrev_b32 %s, 16, v24" % v(ACC2 + 4 * T + 2 * k))
        P.extend(b2r[16 + 2 * T + k])
for r in range(4):
    P("v_cvt_pk_bf16_f32 %s, %s, %s" % (v(48 + 2 * r), v(UA + r), v(UA + 4 + r)))
    P("v_cvt_pk_bf16_f32 %s, %s, %s" % (v(49 + 2 * r), v(UA + 8 + r), v(UA + 12 + r)))
    if r == 3: P("v_add_u32 v27, 0x18000, v27")
    P("buffer_store_dwordx2 %s, v27, %s, %s offen sc1" % (v(48 + 2 * r, 2), SWS, C(8 * r) if r < 3 else "0"))
for k in range(8):
    P("v_pk_fma_f32 %s, %s, v[30:31], v[30:31] op_sel:[0,0,1] op_sel_hi:[1,0,1]" % (v(ACC2 + 2 * k, 2), v(ACC2 + 2 * k, 2)))
P("v_lshrrev_b32 v24, 4, v0")
P("v_and_b32 v25, 15, v0")
P("v_lshlrev_b32 v24, 9, v24")
P("v_lshl_add_u32 v23, v25, 4, v24")
P("s_lshl_b32 %s, %s, 5" % (sT1, sMH))
P("s_add_u32 %s, %s, %s" % (sT1, sT1, sB))
P("s_lshl_b32 %s, %s, 15" % (sT4, sT1))
P("s_lshl_b32 %s, %s, 8" % (sT2, sNH))
P("s_add_u32 %s, %s, %s" % (sT4, sT4, sT2))
P("s_add_u32 %s, %s, %d" % (sT2, sT4, WS_A2))
P("v_add_u32 v26, %s, v23" % sT2)
P("v_lshrrev_b32 v24, 3, v0")
P("s_lshl_b32 %s, %s, 10" % (sT2, sB))
P("s_add_u32 %s, %s, %d" % (sT2, sT2, WS_FLAG))
P("v_lshl_add_u32 v25, v24, 7, %s" % sT2)
for g in b2r[24:40]: P.extend(g)
stamp(P)
spin(P, 25)
stamp(P)
aA2 = 164
tA2 = []; ld = []
for ks in range(16):
    q = Prog()
    tA2.append(q.tagged("buffer_load_dwordx4 %s, v26, %s, %s offen offset:%d sc1" % (a(aA2 + 4 * ks, 4), SWS, C(ks >> 1), 2048 * (ks & 1))))
    ld.append(q.ins)
main = sum(ld, [])
P.extend(weave(main, b2r[40:], after=is_vmem, per=1.5))
P.wait(lg=0)
P("s_barrier")
late = []
g, t = b3_round(["s_cmp_eq_u32 %s, 3" % sW, "s_cselect_b32 %s, 11, %s" % (sT3, sW)]); late += g
g, tB3 = b3_round(["s_add_u32 %s, %s, 12" % (sT3, sW)]); late += g
M = Prog()
for ks in range(16):
    M.wait(vm=tA2[ks])
    for T in range(4):
        M("v_mfma_f32_16x16x32_bf16 %s, %s, %s, %s" % (v(ACC2 + 4 * T, 4), R(B2F(ks, T), 4), a(aA2 + 4 * ks, 4), v(ACC2 + 4 * T, 4)))
P.extend(weave(M.ins, late, after=is_mfma, per=0.25))
P("s_lshl_b32 %s, %s, 12" % (sT2, sJ))
P("s_add_u32 %s, %s, %s" % (sT2, sT2, sT4))
P("s_add_u32 %s, %s, %d" % (sT2, sT2, WS_A3))
P("v_add_u32 v26, %s, v23" % sT2)
P("s_lshl_b32 %s, %s, 11" % (sT2, sT1))
P("s_lshl_b32 %s, %s, 8" % (sT3, sJ))
P("s_add_u32 %s, %s, %s" % (sT2, sT2, sT3))
P("s_lshl_b32 %s, %s, 6" % (sT3, sNH))
P("s_add_u32 %s, %s, %s" % (sT2, sT2, sT3))
P("s_add_u32 %s, %s, %d" % (sT2, sT2, WS_S2))
P("v_lshl_add_u32 v27, v0, 2, %s" % sT2)
P("v_lshlrev_b32 v24, 26, v0")
P("v_and_b32 v24, 0x40000000, v24")
P("v_or_b32 v27, v27, v24")
P("v_mov_b32 v28, 0"); P("v_mov_b32 v29, 0"); P("v_mov_b32 v30, 0"); P("v_mov_b32 v31, 0")
for u in range(2):
    for k in range(4):
        P("v_cvt_pk_bf16_f32 %s, %s, %s" % (v(vX1 + 4 * u + k), v(ACC2 + 8 * u + 2 * k), v(ACC2 + 8 * u + 2 * k + 1)))
    P("buffer_store_dwordx4 %s, v26, %s, 0 offen offset:%d sc1" % (v(vX1 + 4 * u, 4), SWS, 2048 * u))
for k in range(8):
    P("v_dot2c_f32_bf16 %s, %s, %s" % (v(28 + 2 * (k & 1)), sONE, v(vX1 + k)))
    P("v_dot2c_f32_bf16 %s, %s, %s" % (v(29 + 2 * (k & 1)), v(vX1 + k), v(vX1 + k)))
P("v_pk_add_f32 v[28:29], v[28:29], v[30:31]")
P("v_permlane32_swap_b32 v28, v29")
P("v_add_f32 v28, v28, v29")
P("v_mov_b32 v29, v28")
P("v_permlane16_swap_b32 v28, v29")
P("v_add_f32 v28, v28, v29")
tS2 = P.tagged("buffer_store_dword v28, v27, %s, 0 offen sc1" % SWS)
stamp(P)
P("s_mul_i32 %s, %s, 12288" % (sFSL, sW))
P("s_mul_i32 %s, %s, 28672" % (sR3, sW))
P("s_add_u32 %s, %s, %d" % (sR3, sR3, L_B3))
P("s_mul_i32 %s, %s, %d" % (sK4, sW, 448 * 1024))
def b4_dma(k0, k1, sbase, off):
    gs = []; tags = {}
    n = 0
    for pi in range(2 * k0, 2 * k1):
        q = Prog()
        i = n & 3
        if i == 0:
            q("s_add_u32 %s, %s, %d" % (sOFF, sK4, pi * 8192))
            q("s_add_u32 m0, %s, %d" % (sbase, off + 1024 * n))
        t = q.tagged("buffer_load_dwordx4 %s, %s, %s offen offset:%d lds" % (v(vW + i), SW4, sOFF, 1024 * i))
        tags[pi >> 1] = t
        gs.append(q.ins); n += 1
    return gs, tags
def B4F(k, nh):
    return (128 + 8 * k + 4 * nh) if k < 12 else (8 * (k - 12) + 4 * nh)
vT4 = 120
def b4_read(k, base, off):
    gs = []
    for nh in range(2):
        q = Prog()
        q("ds_read_b64_tr_b16 %s, %s offset:%d" % (a(B4F(k, nh), 2), v(base + 2 * nh), off))
        q("ds_read_b64_tr_b16 %s, %s offset:%d" % (a(B4F(k, nh) + 2, 2), v(base + 2 * nh + 1), off))
        gs.append(q.ins)
    return gs
g, tR1 = b4_dma(0, 5, sFSL, 0)
Sx = Prog()
tr32_bases(Sx, vT4, 24, None)
Sx("v_xor_b32 %s, 64, %s" % (v(vT4 + 2), v(vT4)))
Sx("v_xor_b32 %s, 64, %s" % (v(vT4 + 3), v(vT4 + 1)))
for i in range(4):
    Sx("v_add_u32 %s, %s, %s" % (v(vT4 + 4 + i), sR3, v(vT4 + i)))
    Sx("v_add_u32 %s, %s, %s" % (v(vT4 + i), sFSL, v(vT4 + i)))
Sx("v_bfe_u32 v24, v0, 2, 4")
Sx("v_mul_u32_u24 v24, 224, v24")
Sx("v_and_b32 v25, 3, v0")
Sx("v_lshl_add_u32 v24, v25, 3, v24")
Sx("v_add_u32 v116, %d, v24" % L_B3)
Sx("v_add_u32 v117, %d, v24" % (L_B3 + 8 * 7168))
Sx("v_add_u32 v118, %s, v24" % sR3)
for i in range(4): Sx("v_mov_b32 %s, %s" % (v(28 + i), sONE))
Sx("s_lshl_b32 %s, %s, 7" % (sFD, sCU))
Sx("s_add_u32 %s, %s, 32768" % (sFD, sFD))
P.extend(weave(sum(g, []), [Sx.ins[i:i + 4] for i in range(0, len(Sx.ins), 4)], after=is_vmem))
P.wait(vm=tS2)
P("s_barrier")
flag_store(P, 1, sFD, 1)
stamp(P)
ACC3, CS3, BB = 32, 88, 128
M = Prog()
for kk in range(4):
    tg = []
    for T in range(7):
        r = BB + 28 * kk + 4 * T
        M("ds_read_b64_tr_b16 %s, v118 offset:%d" % (v(r, 2), kk * 7168 + T * 32))
        tg.append(M.tagged("ds_read_b64_tr_b16 %s, v118 offset:%d" % (v(r + 2, 2), kk * 7168 + 3584 + T * 32)))
    for T in range(7):
        M.wait(lg=tg[T])
        M("v_mfma_f32_16x16x32_bf16 %s, %s, v[28:31], %s" % (v(CS3 + 4 * T, 4), v(BB + 28 * kk + 4 * T, 4), "0" if kk == 0 else v(CS3 + 4 * T, 4)))
P.extend(M)
P("v_and_b32 v25, 48, v0")
P("v_add_u32 v24, %s, v25" % sFSL)
P("s_mov_b32 exec_lo, 0x00010001")
P("s_mov_b32 exec_hi, 0x00010001")
for T in range(7):
    P("ds_write_b128 v24, %s offset:%d" % (v(CS3 + 4 * T, 4), 10240 + 64 * T))
P("s_mov_b64 exec, -1")
P("s_lshl_b32 %s, %s, 1" % (sT1, sPG))
P("s_add_u32 %s, %s, %s" % (sT1, sT1, sMH))
P("s_lshl_b32 %s, %s, 5" % (sT2, sNH))
P("s_add_u32 %s, %s, %s" % (sHB3, sT1, sT2))
P("s_lshl_b32 %s, %s, 15" % (sT2, sHB3))
P("s_add_u32 %s, %s, %d" % (sT2, sT2, WS_A3))
P("v_add_u32 v26, %s, v23" % sT2)
P("s_lshl_b32 %s, %s, 11" % (sT2, sHB3))
P("s_add_u32 %s, %s, %d" % (sT2, sT2, WS_S2))
P("v_lshl_add_u32 v27, v0, 2, %s" % sT2)
P("v_lshrrev_b32 v24, 3, v0")
P("s_lshl_b32 %s, %s, 10" % (sT2, sT1))
P("s_add_u32 %s, %s, %d" % (sT2, sT2, WS_FLAG + 32768))
P("v_lshl_add_u32 v119, v24, 7, %s" % sT2)
P.wait(lg=0)
P("s_barrier")
for w2 in range(4):
    for T in range(7):
        P("ds_read_b128 %s, v25 offset:%d" % (v(BB + 28 * w2 + 4 * T, 4), 12288 * w2 + 10240 + 64 * T))
P.wait(lg=0)
for k in range(14):
    P("v_pk_add_f32 %s, %s, %s" % (v(BB + 2 * k, 2), v(BB + 2 * k, 2), v(BB + 28 + 2 * k, 2)))
    P("v_pk_add_f32 %s, %s, %s" % (v(BB + 56 + 2 * k, 2), v(BB + 56 + 2 * k, 2), v(BB + 84 + 2 * k, 2)))
for k in range(14):
    P("v_pk_add_f32 %s, %s, %s" % (v(CS3 + 2 * k, 2), v(BB + 2 * k, 2), v(BB + 56 + 2 * k, 2)))
P.wait(vm=tR1[4])
for k in range(5):
    for g in b4_read(k, vT4, 2048 * k): P.extend(g)
P("s_barrier")
stamp(P)
spin(P, 119)
stamp(P)
tA3 = {}; ld = []
for ks in range(16):
    for th in range(2):
        q = Prog()
        tA3[ks, th] = q.tagged("buffer_load_dwordx4 %s, v26, %s, %s offen offset:%d sc1" % (a(8 * ks + 4 * th, 4), SWS, C(ks >> 1), 2048 * (ks & 1) + 256 * th))
        ld.append(q.ins)
ST = 184
for jj in range(8):
    q = Prog()
    tSt = q.tagged("buffer_load_dword %s, v27, %s, 0 offen offset:%d sc1" % (v(ST + jj), SWS, 256 * jj))
    ld.append(q.ins)
g, tR2 = b4_dma(5, 11, sFSL, 0)
ld += g
def b3_reads(ks):
    gs = []; tg = []
    for T in range(7):
        r = BB + 28 * (ks & 1) + 4 * T
        base = 116 + (ks >> 3)
        q = Prog()
        q("ds_read_b64_tr_b16 %s, %s offset:%d" % (v(r, 2), v(base), (ks & 7) * 7168 + T * 32))
        gs.append(q.ins)
        q = Prog()
        tg.append(q.tagged("ds_read_b64_tr_b16 %s, %s offset:%d" % (v(r + 2, 2), v(base), (ks & 7) * 7168 + 3584 + T * 32)))
        gs.append(q.ins)
    return gs, tg
PRE = 12
gs, tg = b3_reads(0)
P.extend(weave(sum(ld[:PRE], []), gs, after=is_vmem, per=2))
M = []
for ks in range(16):
    q = Prog()
    for T in range(7):
        for th in range(2):
            q.wait(vm=tA3[ks, th] if T == 0 else None, lg=tg[T] if th == 0 else None)
            acc = ACC3 + 28 * th + 4 * T
            q("v_mfma_f32_16x16x32_bf16 %s, %s, %s, %s" % (v(acc, 4), v(BB + 28 * (ks & 1) + 4 * T, 4), a(8 * ks + 4 * th, 4), "0" if ks == 0 else v(acc, 4)))
    if ks < 15:
        gs, tg = b3_reads(ks + 1)
        M += weave(q.ins, gs, after=is_mfma)
    else:
        M += q.ins
P.extend(weave(M, ld[PRE:], after=is_mfma, per=0.25))
P("s_barrier")
stamp(P)
P.wait(vm=tSt)
for k in range(2):
    P("v_pk_add_f32 %s, %s, %s" % (v(ST + 2 * k, 2), v(ST + 2 * k, 2), v(ST + 4 + 2 * k, 2)))
P("v_pk_add_f32 %s, %s, %s" % (v(ST, 2), v(ST, 2), v(ST + 2, 2)))
P("v_add_f32 v16, %s, %s" % (v(ST), v(ST + 1)))
P("v_mov_b32 v17, v16")
P("v_permlane32_swap_b32 v16, v17")
P("v_mul_f32 v16, %s, v16" % f2h(-1.0 / 512))
P("v_mul_f32 v17, %s, v17" % f2h(1.0 / 512))
P("v_fma_f32 v17, -v16, v16, v17")
P("v_max_f32 v17, 0, v17")
P("v_add_f32 v17, %s, v17" % f2h(EPS))
P("v_rsq_f32 v19, v17")
P("v_sqrt_f32 v17, v17")
P("v_mov_b32 v20, v16")
P("v_mul_f32 v18, v19, v19")
P("v_mul_f32 v18, v18, v19")
P("v_mul_f32 v19, %s, v19" % f2h(K0))
P("v_mul_f32 v18, %s, v18" % f2h(K1))
P("v_mov_b32 v21, v17")
P("v_mov_b32 v25, v19")
P("v_mov_b32 v24, v18")
P("v_permlane16_swap_b32 v16, v20")
P("v_permlane16_swap_b32 v17, v21")
P("v_permlane16_swap_b32 v19, v25")
P("v_permlane16_swap_b32 v18, v24")
P("s_mul_i32 %s, %s, 114688" % (sT2, sHB3))
P("s_mul_i32 %s, %s, 7168" % (sT3, sM))
P("s_add_u32 %s, %s, %s" % (sT2, sT2, sT3))
P("s_add_u32 %s, %s, %d" % (sT2, sT2, WS_H))
P("v_lshl_add_u32 v26, v0, 4, %s" % sT2)
P("s_lshl_b32 %s, %s, 13" % (sT2, sW))
P("s_add_u32 %s, %s, %d" % (sT2, sT2, WS_FLAG + 32768))
P("v_lshl_add_u32 v27, v0, 7, %s" % sT2)
P.wait(vm=tR2[10])
for k in range(5, 11):
    for g in b4_read(k, vT4, 2048 * (k - 5)): P.extend(g)
g3b, tR3b = b4_dma(17, 28, sR3, 0)
g3a, tR3a = b4_dma(11, 17, sFSL, 0)
E = Prog()
for T in range(7):
    tmp = 128 + 8 * (T & 1); out = 144 + 4 * (T & 1)
    for th in range(2):
        for k in range(2):
            z = ACC3 + 28 * th + 4 * T + 2 * k
            E("v_pk_fma_f32 %s, %s, %s, %s op_sel_hi:[1,0,1]" % (v(z, 2), v(CS3 + 4 * T + 2 * k, 2), v(16 + 4 * th, 2), v(z, 2)))
    q = [Prog(), Prog()]
    for th in range(2):
        gelu_pairs(q[th], [(ACC3 + 28 * th + 4 * T + 2 * k, tmp + 4 * th + 2 * k, out + 2 * th + k) for k in range(2)], 18 if th == 0 else 24, 16 + 4 * th)
    n = len(q[0].ins)
    for i in range(0, n, 2):
        E.extend(q[0].ins[i:i + 2]); E.extend(q[1].ins[i:i + 2])
    E("v_permlane16_swap_b32 %s, %s" % (v(out), v(out + 2)))
    E("v_permlane16_swap_b32 %s, %s" % (v(out + 1), v(out + 3)))
    tHs = E.tagged("buffer_store_dwordx4 %s, v26, %s, %s offen offset:%d sc1" % (v(out, 4), SWS, C(T >> 2), 1024 * (T & 3)))
is_exp = lambda i: i.t is not None and i.t.startswith("v_exp")
P.extend(weave(E.ins, g3b, after=is_exp, per=0.5))
tPo = P.tagged("buffer_load_dword %s, v27, %s, 0 offen sc1" % (v(vPOLL), SWS))
stamp(P)
P.wait(lg=0)
aG, aU = 224, 240
Gp = Prog()
Gp("s_lshl_b32 %s, %s, 5" % (sT1, sMH))
Gp("s_add_u32 %s, %s, %s" % (sT1, sT1, sB))
Gp("s_cmp_eq_u32 %s, 0" % sT1)
Gp("s_cselect_b32 %s, 32, 31" % sT2)
Gp("s_sub_u32 %s, 64, %s" % (sT3, sT1))
Gp("s_and_b32 %s, %s, 63" % (sT3, sT3))
Gp("s_cmp_lt_u32 %s, 4" % sJ)
Gp("s_cselect_b32 %s, %s, %s" % (sT3, sT1, sT3))
Gp("s_cselect_b64 vcc, -1, 0")
Gp("v_and_b32 v16, 31, v0")
Gp("v_sub_u32 v17, %s, v16" % sT2)
Gp("v_cndmask_b32 v17, v17, v16, vcc")
Gp("v_cvt_f32_u32 v17, v17")
Gp("v_bfe_u32 v18, v0, 5, 1")
Gp("v_mul_f32 v17, %s, v17" % f2h(1.0 / 32))
Gp("v_cvt_f32_u32 v19, v18")
Gp("v_mul_f32 v19, 4.0, v19")
Gp("v_mul_f32 v19, v19, v17")
Gp("s_lshl_b32 %s, %s, 6" % (sT4, sJ))
Gp("s_lshl_b32 %s, %s, 5" % (sT5, sNH))
Gp("s_add_u32 %s, %s, %s" % (sT4, sT4, sT5))
Gp("v_add_u32 v16, %s, v16" % sT4)
Gp("v_sub_u32 v20, 0, v16")
Gp("v_and_b32 v20, 0xff, v20")
Gp("v_cndmask_b32 v20, v20, v16, vcc")
Gp("v_lshlrev_b32 v20, 2, v20")
Gp("v_lshl_add_u32 v20, v18, 12, v20")
Gp("s_lshl_b32 %s, %s, 15" % (sT3, sT3))
Gp("s_add_u32 %s, %s, %d" % (sT3, sT3, WS_U))
Gp("v_add_u32 v20, %s, v20" % sT3)
Gp("v_mov_b32 v21, 0x%x" % OOB)
Gp("v_cmp_eq_u32 vcc, 0, v16")
Gp("v_cndmask_b32 v28, v20, v21, vcc")
gg = [Gp.ins]
for ks in range(4):
    for i in range(4):
        q = Prog()
        q("v_fmamk_f32 v20, v17, %s, v19" % f2h(8 * ks + i))
        q("v_cos_f32 v21, v20"); q("v_sin_f32 v22, v20")
        q("s_nop 0")
        q("v_cvt_pk_bf16_f32 v21, v21, v22")
        q("v_accvgpr_write_b32 %s, v21" % a(aG + 4 * ks + i))
        gg.append(q.ins)
P.extend(weave(sum(g3a, []), gg, after=is_vmem, per=1.5))
P("s_add_u32 %s, %s, 32768" % (sFD, sFD))
spin(P, 27, first=tPo)
P("s_barrier")
flag_store(P, 2, sFD, 1)
P("s_cmp_eq_u32 s2, 0")
P("s_cselect_b32 %s, %d, 0" % (sT4, WS_FLAG))
P("s_cselect_b32 %s, 0, 0x%x" % (sT5, 0x10000000))
P("v_subrev_u32 v16, %s, v1" % sT4)
P("v_or_b32 v16, %s, v16" % sT5)
P("buffer_store_dword %s, v16, %s, 0 offen sc1" % (v(vTAG), SWS))
stamp(P)
tU = None
for ks in range(4):
    for i in range(4):
        tU = P.tagged("buffer_load_dword %s, v28, %s, %s offen offset:%d sc1" % (a(aU + 4 * ks + i), SWS, C(2 * ks), 1024 * i))
XFIN = 112
P("v_lshrrev_b32 v16, 3, v0")
P("v_and_b32 v17, 7, v0")
P("v_lshlrev_b32 v18, 16, v16")
P("v_lshl_add_u32 v18, v17, 4, v18")
P("s_lshl_b32 %s, %s, 19" % (sT2, sW))
P("s_lshl_b32 %s, %s, 7" % (sT3, sCU))
P("s_add_u32 %s, %s, %s" % (sT2, sT2, sT3))
P("v_add_u32 v29, %s, v18" % sT2)
for mh in range(2):
    tXf = P.tagged("buffer_load_dwordx4 %s, v29, %s, %s offen" % (v(XFIN + 4 * mh, 4), SX, C(8 * mh)))
for k in range(17, 28):
    for g in b4_read(k, vT4 + 4, 2048 * (k - 17)): P.extend(g)
P.wait(vm=tR3a[16])
for k in range(11, 17):
    for g in b4_read(k, vT4, 2048 * (k - 11)): P.extend(g)
P("s_mul_i32 %s, %s, 114688" % (sT2, sB))
P("s_mul_i32 %s, %s, 28672" % (sT3, sW))
P("s_add_u32 %s, %s, %s" % (sT2, sT2, sT3))
P("s_add_u32 %s, %s, %d" % (sT2, sT2, WS_H))
P("v_lshl_add_u32 v26, v0, 4, %s" % sT2)
P("v_add_u32 v27, %d, v26" % (32 * 114688))
P("s_lshl_b32 %s, %s, 11" % (sT2, sPG))
P("s_lshl_b32 %s, %s, 9" % (sT3, sW))
P("s_add_u32 %s, %s, %s" % (sT2, sT2, sT3))
P("s_add_u32 %s, %s, %d" % (sT2, sT2, WS_FLAG + 65536))
P("v_lshrrev_b32 v24, 4, v0")
P("v_lshl_add_u32 v25, v24, 7, %s" % sT2)
P("v_and_b32 v18, 31, v0")
P("v_bfe_u32 v19, v0, 5, 1")
P("v_xor_b32 v20, v19, v17")
P("v_lshlrev_b32 v20, 4, v20")
P("v_lshl_add_u32 v20, v18, 8, v20")
P("v_add_u32 v30, %s, v20" % sR3)
P("v_lshlrev_b32 v20, 1, v17")
P("v_xor_b32 v20, v20, v16")
P("v_lshlrev_b32 v20, 4, v20")
P("v_lshl_add_u32 v20, v16, 8, v20")
P("s_lshl_b32 %s, %s, 11" % (sT2, sW))
P("s_add_u32 %s, %s, %d" % (sT2, sT2, L_B3))
P("v_add_u32 v31, %s, v20" % sT2)
P("v_lshlrev_b32 v22, 6, v18")
P("v_lshl_add_u32 v22, v19, 3, v22")
P("v_add_u32 v22, %s, v22" % sR3)
P("v_bfe_u32 v21, v0, 2, 1")
P("v_mul_u32_u24 v21, 28672, v21")
P("v_lshl_add_u32 v21, v16, 6, v21")
P("v_and_b32 v19, 3, v0")
P("v_lshl_add_u32 v21, v19, 4, v21")
P("s_lshl_b32 %s, %s, 9" % (sT2, sW))
P("s_add_u32 %s, %s, %d" % (sT2, sT2, L_B3 + 16384))
P("v_add_u32 v21, %s, v21" % sT2)
P("v_and_b32 v19, 15, v0")
P("v_lshlrev_b32 v19, 7, v19")
P("v_lshl_add_u32 v19, v24, 3, v19")
P("v_add_u32 v24, %s, v19" % sR3)
P("s_mul_i32 %s, %s, 28672" % (sT2, sMH))
P("s_lshl_b32 %s, %s, 10" % (sT3, sNH))
P("s_add_u32 %s, %s, %s" % (sT2, sT2, sT3))
P("s_add_u32 %s, %s, %d" % (sT2, sT2, L_B3 + 18432))
P("v_lshl_add_u32 v20, v0, 4, %s" % sT2)
stamp(P)
spin(P, 25)
stamp(P)
ACC4, YA, RD, RING, NR = 32, 96, 128, 160, 24
tA4 = []; ld = []
for n in range(56):
    mh, i = divmod(n, 28)
    q = Prog()
    tA4.append(q.tagged("buffer_load_dwordx4 %s, %s, %s, %s offen offset:%d sc1" % (v(RING + 4 * (n % NR), 4), v(26 + mh), SWS, C(i >> 2), 1024 * (i & 3))))
    ld.append(q.ins)
Y = Prog()
Y.wait(lg=0)
for ks in range(4):
    Y("v_mfma_f32_32x32x16_bf16 %s, %s, %s, %s" % (v(YA, 16), a(aU + 4 * ks, 4), a(aG + 4 * ks, 4), "0" if ks == 0 else v(YA, 16)))
for T in range(4):
    Y("ds_write_b64 v24, %s offset:%d" % (v(vX1 + 2 * T, 2), 18432 + 32 * T))
for g in range(4):
    Y("v_cvt_pk_bf16_f32 %s, %s, %s" % (v(YA + 4 * g), v(YA + 4 * g), v(YA + 4 * g + 1)))
    Y("v_cvt_pk_bf16_f32 %s, %s, %s" % (v(YA + 4 * g + 1), v(YA + 4 * g + 2), v(YA + 4 * g + 3)))
    Y("ds_write_b64 v22, %s offset:%d" % (v(YA + 4 * g, 2), 16384 + 16 * g))
PRE4 = 16
P.extend(weave(sum(ld[:PRE4], []), [Y.ins[i:i + 3] for i in range(0, len(Y.ins), 3)], after=is_vmem, start=4))
def mf(n):
    mh, i = divmod(n, 28)
    q = Prog()
    q.wait(vm=tA4[n])
    for nh in range(2):
        acc = ACC4 + 32 * mh + 16 * nh
        q("v_mfma_f32_32x32x16_bf16 %s, %s, %s, %s" % (v(acc, 16), a(B4F(i, nh), 4), v(RING + 4 * (n % NR), 4), "0" if i == 0 else v(acc, 16)))
    if n + PRE4 < 56: q.extend(ld[n + PRE4])
    return q.ins
def red_write(mh):
    gs = []
    for nh in range(2):
        for g in range(4):
            q = Prog()
            if g: q("v_xor_b32 v16, %d, v30" % (32 * g))
            q("ds_write_b128 %s, %s offset:%d" % ("v16" if g else "v30", v(ACC4 + 32 * mh + 16 * nh + 4 * g, 4), 8192 * mh + 128 * nh))
            gs.append(q.ins)
    return gs
def fin(mh, pk):
    gs = []
    q = Prog(); q.wait(lg=0); q("s_barrier"); q("v_xor_b32 v16, 16, v31"); q("v_add_u32 v17, %d, v31" % 57344); q("v_add_u32 v18, %d, v16" % 57344); gs.append(q.ins)
    q = Prog()
    tY = q.tagged("ds_read_b128 %s, v21 offset:%d" % (v(YA, 4), 57344 * mh))
    tX1 = q.tagged("ds_read_b128 %s, v20 offset:%d" % (v(YA + 4, 4), 57344 * mh)); gs.append(q.ins)
    tp = []
    for w2 in range(4):
        q = Prog()
        b0, b1 = ("v31", "v16") if w2 < 2 else ("v17", "v18")
        q("ds_read_b128 %s, %s offset:%d" % (v(RD + 8 * w2, 4), b0, 28672 * (w2 & 1) + 8192 * mh))
        tp.append(q.tagged("ds_read_b128 %s, %s offset:%d" % (v(RD + 8 * w2 + 4, 4), b1, 28672 * (w2 & 1) + 8192 * mh)))
        gs.append(q.ins)
    Q = Prog()
    A = ACC4 + 32 * mh
    Q.wait(lg=tX1)
    for k in range(4):
        Q("v_lshlrev_b32 %s, 16, %s" % (v(A + 2 * k), v(YA + 4 + k)))
        Q("v_and_b32 %s, 0xffff0000, %s" % (v(A + 2 * k + 1), v(YA + 4 + k)))
    for w2 in range(4):
        Q.wait(lg=tp[w2])
        if pk:
            for k in range(4): Q("v_pk_add_f32 %s, %s, %s" % (v(A + 2 * k, 2), v(A + 2 * k, 2), v(RD + 8 * w2 + 2 * k, 2)))
        else:
            for k in range(8): Q("v_add_f32 %s, %s, %s" % (v(A + k), v(A + k), v(RD + 8 * w2 + k)))
    for k in range(8): Q("v_mul_f32 %s, %s, %s" % (v(A + 24 + k), f2h(-math.log2(math.e)), v(A + k)))
    for k in range(8):
        Q("v_exp_f32 %s, %s" % (v(A + 24 + k), v(A + 24 + k)))
    for k in range(4):
        Q("v_lshlrev_b32 %s, 16, %s" % (v(A + 8 + 2 * k), v(YA + k)))
        Q("v_and_b32 %s, 0xffff0000, %s" % (v(A + 8 + 2 * k + 1), v(YA + k)))
    for k in range(8): Q("v_add_f32 %s, 1.0, %s" % (v(A + 24 + k), v(A + 24 + k)))
    for k in range(8): Q("v_rcp_f32 %s, %s" % (v(A + 24 + k), v(A + 24 + k)))
    for k in range(4):
        Q("v_lshlrev_b32 %s, 16, %s" % (v(A + 16 + 2 * k), v(XFIN + 4 * mh + k)))
        Q("v_and_b32 %s, 0xffff0000, %s" % (v(A + 16 + 2 * k + 1), v(XFIN + 4 * mh + k)))
    for k in range(8): Q("v_mul_f32 %s, %s, %s" % (v(A + k), v(A + k), v(A + 24 + k)))
    for k in range(8): Q("v_fmac_f32 %s, %s, %s" % (v(A + 16 + k), v(A + k), v(A + 8 + k)))
    for k in range(4): Q("v_cvt_pk_bf16_f32 %s, %s, %s" % (v(A + k), v(A + 16 + 2 * k), v(A + 16 + 2 * k + 1)))
    Q("buffer_store_dwordx4 %s, v29, %s, %s offen" % (v(A, 4), SO, C(8 * mh)))
    gs += [Q.ins[i:i + 4] for i in range(0, len(Q.ins), 4)]
    return gs
for n in range(28): P.extend(mf(n))
M = []
for n in range(28, 56): M += mf(n)
P.extend(weave(M, red_write(0) + fin(0, False), after=is_mfma, start=2))
stamp(P)
for g in red_write(1) + fin(1, True): P.extend(g)
stamp(P)
if STAMP:
    P("s_waitcnt vmcnt(0)")
    stamp(P)
    n = nstamp[0]
    assert n <= 22
    for k in range(n):
        P("v_writelane_b32 v16, s%d, %d" % (STAMP_S + k, k))
    P("s_lshl_b32 %s, s2, 2" % sT2)
    P("s_add_u32 %s, %s, %s" % (sT2, sT2, sW))
    P("s_lshl_b32 %s, %s, 8" % (sT2, sT2))
    P("s_add_u32 %s, %s, %d" % (sT2, sT2, WS_STAMP))
    P("v_lshl_add_u32 v17, v0, 2, %s" % sT2)
    P("buffer_store_dword v16, v17, %s, 0 offen" % SWS)
P("L_end:")
P("s_endpgm")

import asmlib
_parse = asmlib.parse
def parse2(t):
    if t.startswith("/*rare*/"): t = t[9:]
    return _parse(t)
asmlib.parse = parse2
lines, nops = finalize(P.ins)
lines = [l[9:] if l.startswith("/*rare*/") else l for l in lines]

hdr = open("cdna_kernels/%s.s.ref" % NAME).read().split("; Override launch")[0]
txt = hdr + "; @launch grid=(256,1,1) block=(256,1,1) lds=%d\n" % LDS_BYTES
txt += """.amdgcn_target "amdgcn-amd-amdhsa--gfx950"
.text
.globl %s_kernel
.p2align 8
.type %s_kernel,@function
%s_kernel:
""" % (NAME, NAME, NAME)
txt += "\n".join(("" if l.endswith(":") else "  ") + l for l in lines) + "\n"
txt += """L_pad:
  .fill (65536 + 64 - (L_pad - L_pc)) / 4, 4, 0xbf800000
.section .rodata,"a"
.p2align 6
.amdhsa_kernel %s_kernel
  .amdhsa_next_free_vgpr 512
  .amdhsa_next_free_sgpr 102
  .amdhsa_accum_offset 256
  .amdhsa_group_segment_fixed_size 0
  .amdhsa_kernarg_size 104
  .amdhsa_user_sgpr_count 2
  .amdhsa_user_sgpr_kernarg_segment_ptr 1
  .amdhsa_system_sgpr_workgroup_id_x 1
.end_amdhsa_kernel
""" % NAME
open(OUT, "w").write(txt)
print("instructions:", sum(1 for l in lines if not l.endswith(":")), "nops inserted:", nops, "stamps:", nstamp[0])
```

```python
import sys, struct, math
from asmlib import *

NAME = "recurrent_scan__spectral_fnet__mixer_s_mlp__prompt"
STAMP = any(a.startswith(("--stamp","--leak")) for a in sys.argv)
LEAK = [int(a[7:]) for a in sys.argv if a.startswith("--leak=")]
OUT = [a for a in sys.argv[1:] if not a.startswith("--")][0]

def f2h(x): return "0x%08x" % struct.unpack("<I", struct.pack("<f", x))[0]
def v(a, n=1): return "v%d" % a if n == 1 else "v[%d:%d]" % (a, a + n - 1)
def a(x, n=1): return "a%d" % x if n == 1 else "a[%d:%d]" % (x, x + n - 1)
def R(r, n=1): return v(r[1], n) if r[0] == "v" else a(r[1], n)

WS_E = 0
WS_FLAG = 0x10000
WS_S2 = 0x40000
WS_STAMP = 0x80000
WS_A2 = 0x200000
WS_A3 = 0x400000
WS_U = 0x600000
WS_H = 0x800000
OOB = 0x7f000000
L_B12 = 0
L_X = 65536
L_B3 = 49152
L_ST = 149504
L_FIN = L_ST + 2048
L_Z = L_FIN + 1024
LDS_BYTES = 163840
SX, SW1, SW2, SW3, SW4, SO, SWS = "s[8:11]", "s[12:15]", "s[16:19]", "s[20:23]", "s[24:27]", "s[28:31]", "s[32:35]"
sB, sJ, sW, sMH, sNH, sM, sPG, sONE, sCNT, sCU = "s36", "s37", "s38", "s39", "s40", "s41", "s42", "s43", "s44", "s45"
sT0, sT1, sT2, sT3, sT4, sT5 = "s46", "s47", "s48", "s49", "s50", "s51"
sOFF = "s52"; sHB3 = "s53"; sFD = "s54"; sNEG = "s55"; sFSL = "s56"; sR3 = "s57"; sK4 = "s58"
def C(k): return "0" if k == 0 else "s%d" % (63 + k)
STAMP_S = 80
vL = 0; vW = 2; vTAG = 6; vPOLL = 7; vX1 = 8
K0 = -2.0 * math.log2(math.e) * math.sqrt(2.0 / math.pi)
K1 = K0 * 0.044715
EPS = 1e-5

P = Prog()
nstamp = [0]
def stamp(p):
    if STAMP:
        k = nstamp[0]; nstamp[0] += 1
        p("s_memrealtime s[%d:%d]" % (4, 5))
        p("s_waitcnt lgkmcnt(0)")
        p("s_mov_b32 s%d, s4" % (STAMP_S + k))
lab = [0]
def spin(p, vaddr, first=None):
    lab[0] += 1
    L = "L_spin%d" % lab[0]
    if first is not None:
        p.wait(vm=first)
        p("v_cmp_ne_u32 vcc, %s, %s" % (v(vPOLL), v(vTAG)))
        p("s_nop 1")
        p("s_cbranch_vccz %s_done" % L)
    p("%s:" % L)
    q = Ins("buffer_load_dword %s, %s, %s, 0 offen sc1" % (v(vPOLL), v(vaddr), SWS))
    if first is None:
        p.ins.append(q)
        p("s_waitcnt vmcnt(0)")
    else:
        p.ins.append(Ins("/*rare*/ " + q.t)); p.ins.append(Ins("/*rare*/ s_waitcnt vmcnt(0)"))
    p("v_cmp_ne_u32 vcc, %s, %s" % (v(vPOLL), v(vTAG)))
    p("s_sub_u32 %s, %s, 1" % (sCNT, sCNT))
    p("s_cbranch_scc1 %s_done" % L)
    p("s_cbranch_vccnz %s" % L)
    p("%s_done:" % L)

def flag_store(p, kind, sidx, vtmp):
    lab[0] += 1
    p("buffer_store_dword %s, %s, %s, %s offen sc1" % (v(vTAG), v(vtmp), SWS, sidx))

P("s_cmp_ge_u32 s2, 0x100")
P("s_cbranch_scc1 L_end")
for s, off in ((12, 48), (8, 0), (32, 96), (16, 56), (20, 64), (24, 72), (28, 80)):
    P("s_load_dwordx2 s[%d:%d], s[0:1], %d" % (s, s + 1, off))
if STAMP:
    P("s_memrealtime s[6:7]")
P("s_getpc_b64 s[4:5]")
P("L_pc:")
P("s_lshr_b32 s3, s2, 3")
P("s_lshl_b32 %s, s3, 11" % sT0)
P("s_add_u32 s4, s4, %s" % sT0)
P("s_addc_u32 s5, s5, 0")
P("v_lshlrev_b32 v16, 3, v0")
P("v_mov_b32 v17, s5")
P("v_add_co_u32 v16, vcc, s4, v16")
P("v_lshrrev_b32 v1, 6, v0")
P("v_and_b32 v0, 63, v0")
P("v_addc_co_u32 v17, vcc, 0, v17, vcc")
P("v_readfirstlane_b32 %s, v1" % sW)
P("global_load_dwordx2 v[30:31], v[16:17], off")
P("s_and_b32 %s, s3, 7" % sJ)
P("s_and_b32 %s, s3, 15" % sM)
P("s_lshr_b32 %s, s3, 3" % sT0)
P("s_and_b32 %s, s2, 7" % sT1)
P("s_lshl_b32 %s, %s, 2" % (sT1, sT1))
P("s_add_u32 %s, %s, %s" % (sB, sT0, sT1))
P("s_lshr_b32 %s, %s, 1" % (sPG, sB))
P("s_lshr_b32 %s, %s, 1" % (sMH, sW))
P("s_and_b32 %s, %s, 1" % (sNH, sW))
P("s_lshl_b32 %s, %s, 3" % (sCU, sB))
P("s_add_u32 %s, %s, %s" % (sCU, sCU, sJ))
for s, n in ((12, 512 * 1024), (8, 2048 * 1024), (32, 1 << 28), (16, 512 * 1024), (20, 512 * 3584), (24, 1792 * 1024), (28, 2048 * 1024)):
    P("s_mov_b32 s%d, 0x%x" % (s + 2, n))
    P("s_mov_b32 s%d, 0x20000" % (s + 3))
P("v_lshrrev_b32 v16, 3, v0")
P("v_and_b32 v17, 2, v16")
P("v_bfe_u32 v18, v0, 5, 1")
P("v_or_b32 v17, v17, v18")
P("v_lshlrev_b32 v17, 1, v17")
P("v_and_b32 v19, 7, v0")
P("v_xor_b32 v17, v17, v19")
P("v_lshlrev_b32 v17, 4, v17")
P("v_lshl_add_u32 v17, v16, 10, v17")
P("s_lshl_b32 %s, %s, 7" % (sT0, sJ))
P("v_add_u32 %s, %s, v17" % (v(vW), sT0))
for i in range(1, 4):
    P("v_add_u32 %s, %d, %s" % (v(vW + i), 7168 * i, v(vW)))
P("s_lshl_b32 %s, %s, 4" % (sT0, sNH))
P("v_add_u32 v22, %s, v16" % sT0)
P("s_lshl_b32 %s, %s, 5" % (sT1, sMH))
P("s_add_u32 %s, %s, %s" % (sT1, sT1, sB))
P("s_lshl_b32 %s, %s, 10" % (sT2, sT1))
P("v_lshlrev_b32 v22, 16, v22")
P("v_add_u32 v22, %s, v22" % sT2)
P("v_lshrrev_b32 v23, 1, v16")
P("v_xor_b32 v23, v23, v19")
P("v_lshl_add_u32 v20, v23, 4, v22")
P("v_xor_b32 v21, 64, v20")
P("v_add_u32 v21, %d, v21" % (8 * 65536 - 1024))
P("s_lshl_b32 %s, %s, 15" % (sOFF, sW))
P("s_lshl_b32 m0, %s, 12" % sW)
P("s_waitcnt lgkmcnt(0)")
if STAMP:
    P("s_mov_b32 s%d, s6" % (STAMP_S + 0)); nstamp[0] = 1

def w_dma_round(srd, r, first_setup=True):
    g = []
    for i in range(4):
        q = Prog()
        t = q.tagged("buffer_load_dwordx4 %s, %s, %s offen offset:%d lds" % (v(vW + i), srd, sOFF, 1024 * i))
        if i == 3 and r < 3:
            q("s_add_u32 %s, %s, 0x20000" % (sOFF, sOFF))
            q("s_add_u32 m0, m0, 0x4000")
        g.append(q.ins)
    return g, t

dma = []; tB1 = []; tX = []
for r in range(4):
    g, t = w_dma_round(SW1, r); dma += g; tB1.append(t)
for kc in range(8):
    q = Prog()
    if kc == 0:
        q("s_lshl_b32 %s, %s, 11" % (sT0, sW))
        q("s_add_u32 m0, %s, %d" % (sT0, L_X))
    else:
        q("s_add_u32 m0, m0, %d" % (8192 - 128))
    q("buffer_load_dwordx4 v20, %s, 0 offen offset:%d lds" % (SX, kc * 128))
    dma.append(q.ins)
    q = Prog()
    t = q.tagged("buffer_load_dwordx4 v21, %s, 0 offen offset:%d lds" % (SX, kc * 128 + 1024))
    dma.append(q.ins); tX.append(t)

BD = 64
S = Prog()
S("v_and_b32 v22, 31, v0")
S("s_lshl_b32 %s, %s, 5" % (sT3, sJ))
S("v_add_u32 v22, %s, v22" % sT3)
S("v_mov_b32 v23, 0x100")
S("v_cmp_eq_u32 vcc, 0, v22")
S("v_cvt_f32_u32 v25, v18")
S("s_mul_i32 %s, %s, 0x3e800000" % (sT3, sNH))
S("v_cndmask_b32 v22, v22, v23, vcc")
S("v_cvt_f32_u32 v24, v22")
S("v_mul_f32 v24, %s, v24" % f2h(1.0 / 512))
S("v_mul_f32 v25, 0x41000000, v25")
S("v_fma_f32 v26, v25, v24, %s" % sT3)
S("v_add_f32 v27, v26, v24")
S("v_mul_f32 v25, %s, v24" % f2h(10.0))
S("v_add_f32 v24, v24, v24")
trig = [[i] for i in S.ins]
for s in range(16):
    for k in range(4):
        q = Prog()
        q("v_cos_f32 v28, v26"); q("v_cos_f32 v29, v27")
        d = "v25" if k == 3 else "v24"
        q("v_add_f32 v26, v26, %s" % d); q("v_add_f32 v27, v27, %s" % d)
        q("v_cvt_pk_bf16_f32 %s, v28, v29" % v(BD + 4 * s + k))
        trig.append(q.ins)
main = []
for g in dma: main += g
body = weave(main, [sum(trig[:15], [])] + trig[15:], after=is_vmem, start=6, per=2)
P.extend(body)
P("v_lshrrev_b32 v22, 4, v0")
P("v_lshlrev_b32 v22, 15, v22")
P("v_and_b32 v23, 15, v0")
P("v_lshl_add_u32 v22, v23, 7, v22")
P("s_lshl_b32 %s, %s, 11" % (sT0, sPG))
P("s_add_u32 %s, %s, %d" % (sT0, sT0, WS_FLAG))
P("v_mov_b32 v23, 0")
tE = P.tagged("buffer_load_dword %s, v23, %s, 0 offen sc1" % (v(vTAG), SWS))
P("buffer_load_dword %s, v22, %s, %s offen sc1" % (v(vPOLL), SWS, sT0))
for k in range(1, 17):
    P("s_mov_b32 %s, %d" % (C(k), 4096 * k))
P("s_mov_b32 %s, 0x3f803f80" % sONE)
P("s_mov_b32 %s, 0x80008000" % sNEG)
P("s_mov_b32 %s, 0x40000" % sCNT)
def tr32_bases(p, d0, tmp, nh_sgpr):
    t0, t1, t2 = tmp, tmp + 1, tmp + 2
    p("v_bfe_u32 %s, v0, 2, 2" % v(t0))
    p("v_bfe_u32 %s, v0, 5, 1" % v(t1))
    p("v_lshl_add_u32 %s, %s, 3, %s" % (v(t1), v(t1), v(t0)))
    p("v_bfe_u32 %s, v0, 4, 1" % v(t2))
    p("v_and_b32 %s, 2, %s" % (v(t0), v(t0)))
    p("v_xor_b32 %s, %s, %s" % (v(t2), v(t2), v(t0)))
    if nh_sgpr is not None:
        p("s_lshl_b32 %s, %s, 1" % (sT5, nh_sgpr))
        p("v_xor_b32 %s, %s, %s" % (v(t2), sT5, v(t2)))
    p("v_lshlrev_b32 %s, 5, %s" % (v(t2), v(t2)))
    p("v_and_b32 %s, 3, v0" % v(t0))
    p("v_lshl_add_u32 %s, %s, 3, %s" % (v(t2), v(t0), v(t2)))
    p("v_lshl_add_u32 %s, %s, 7, %s" % (v(d0), v(t1), v(t2)))
    p("v_xor_b32 %s, 32, %s" % (v(d0 + 1), v(d0)))
    p("v_add_u32 %s, 512, %s" % (v(d0 + 1), v(d0 + 1)))
tr32_bases(P, 16, 22, sNH)
P("v_and_b32 v22, 31, v0")
P("v_bfe_u32 v23, v0, 1, 3")
P("v_bfe_u32 v24, v0, 5, 1")
P("v_xor_b32 v23, v23, v24")
P("v_lshlrev_b32 v23, 4, v23")
P("v_lshl_add_u32 v23, v22, 7, v23")
P("s_lshl_b32 %s, %s, 12" % (sT0, sMH))
P("s_add_u32 %s, %s, %d" % (sT0, sT0, L_X))
P("v_add_u32 v18, %s, v23" % sT0)
for i in range(1, 4):
    P("v_xor_b32 %s, %d, v18" % (v(18 + i), 32 * i))
aONE = 152
for i in range(4):
    P("v_accvgpr_write_b32 %s, %s" % (a(aONE + i), sONE))
P("v_and_b32 v22, 15, v0")
P("s_lshl_b32 %s, %s, 4" % (sT0, sW))
P("v_add_u32 v22, %s, v22" % sT0)
P("v_cvt_f32_u32 v22, v22")
P("v_bfe_u32 v23, v0, 5, 1")
P("v_bfe_u32 v24, v0, 4, 1")
P("v_lshlrev_b32 v23, 10, v23")
P("v_lshl_add_u32 v23, v24, 8, v23")
P("v_add_u32 v23, %s, v23" % sB)
P("v_cvt_f32_u32 v23, v23")
P("v_mul_f32 v23, v23, v22")
P("v_mul_f32 v23, %s, v23" % f2h(1.0 / 2048))
P("v_mul_f32 v22, %s, v22" % f2h(1.0 / 32))
stamp(P)
CS1, ACC1, XF = 32, 48, 128
aFC, aFN, aFP = 128, 136, 144
ftrig = []
for mh2 in range(2):
    for k in range(4):
        i0 = 2 * k
        kk = [((i & 3) + 8 * (i >> 2) + 0.5 * mh2) for i in (i0, i0 + 1)]
        g = lambda *t: [Ins(x) for x in t]
        ftrig.append(g("v_fmamk_f32 v24, v22, %s, v23" % f2h(kk[0]), "v_fmamk_f32 v25, v22, %s, v23" % f2h(kk[1]), "v_cos_f32 v26, v24"))
        ftrig.append(g("v_cos_f32 v27, v25", "v_sin_f32 v28, v24"))
        ftrig.append(g("v_sin_f32 v29, v25", "v_cvt_pk_bf16_f32 v26, v26, v27", "v_cvt_pk_bf16_f32 v28, v28, v29"))
        ftrig.append(g("v_accvgpr_write_b32 %s, v26" % a(aFC + 4 * mh2 + k), "v_xor_b32 v27, %s, v28" % sNEG,
                       "v_accvgpr_write_b32 %s, v28" % a(aFP + 4 * mh2 + k), "v_accvgpr_write_b32 %s, v27" % a(aFN + 4 * mh2 + k)))
M = Prog()
for r in range(4):
    M.wait(vm=tB1[r]); M("s_barrier")
    tg = []
    for s in range(8 * r, 8 * r + 8):
        M("ds_read_b64_tr_b16 %s, v16 offset:%d" % (a(4 * s, 2), 2048 * s))
        tg.append(M.tagged("ds_read_b64_tr_b16 %s, v17 offset:%d" % (a(4 * s + 2, 2), 2048 * s)))
    for n, s in enumerate(range(8 * r, 8 * r + 8)):
        M.wait(lg=tg[n])
        M("v_mfma_f32_32x32x16_bf16 %s, %s, %s, %s" % (v(CS1, 16), a(4 * s, 4), a(aONE, 4), "0" if s == 0 else v(CS1, 16)))
P.extend(weave(M.ins, ftrig, after=is_mfma))
stamp(P)
P("s_lshl_b32 %s, %s, 15" % (sOFF, sW))
P("s_lshl_b32 m0, %s, 12" % sW)
P("v_mov_b32 v24, 0"); P("v_mov_b32 v25, 0"); P("v_mov_b32 v26, 0"); P("v_mov_b32 v27, 0")
b2 = []; tB2 = None
for r in range(4):
    g, tB2 = w_dma_round(SW2, r); b2 += g
P("v_and_b32 v22, 31, v0")
P("v_bfe_u32 v23, v0, 5, 1")
P("s_lshl_b32 %s, %s, 10" % (sT0, sMH))
P("s_add_u32 %s, %s, %d" % (sT0, sT0, L_ST))
P("v_lshl_add_u32 v29, v22, 5, %s" % sT0)
P("s_lshl_b32 %s, %s, 4" % (sT0, sNH))
P("v_lshl_add_u32 v28, v23, 3, v29")
P("v_add_u32 v28, %s, v28" % sT0)
P("v_and_b32 v22, 15, v0")
P("v_bfe_u32 v30, v0, 1, 3")
P("v_xor_b32 v30, v30, v23")
P("v_lshlrev_b32 v30, 4, v30")
P("v_lshl_add_u32 v30, v22, 7, v30")
P("v_bfe_u32 v31, v0, 4, 1")
P("v_lshl_add_u32 v30, v31, 3, v30")
P("s_lshl_b32 %s, %s, 11" % (sT0, sW))
P("s_lshl_b32 %s, %s, 13" % (sT1, sJ))
P("s_add_u32 %s, %s, %s" % (sT0, sT0, sT1))
P("s_add_u32 %s, %s, %d" % (sT0, sT0, L_X))
P("v_add_u32 v30, %s, v30" % sT0)
P("s_cmp_eq_u32 %s, 0" % sNH)
aRES = 156
M = Prog()
def stats_block(p, c):
    lab[0] += 1
    L = "L_st%d" % lab[0]
    p("s_cmp_eq_u32 %s, 0" % sNH)
    p("s_cbranch_scc1 %s_a" % L)
    for par in (1, 0):
        for s in range(8 * c + 4 * par, 8 * c + 4 * par + 4):
            for k in range(4):
                x = v(XF + 4 * s + k)
                p("v_dot2c_f32_bf16 %s, %s, %s" % (v(24 + 2 * (k & 1)), sONE, x))
                p("v_dot2c_f32_bf16 %s, %s, %s" % (v(25 + 2 * (k & 1)), x, x))
        if par == 1:
            p("s_branch %s_b" % L); p("%s_a:" % L)
    p("%s_b:" % L)
    p("s_nop 2")
for c in range(4):
    M.wait(vm=tX[2 * c + 1], lg=0 if c == 0 else None); M("s_barrier")
    tg = []
    for s in range(8 * c, 8 * c + 8):
        tg.append(M.tagged("ds_read_b128 %s, %s offset:%d" % (v(XF + 4 * s, 4), v(18 + (s & 3)), 8192 * (s >> 2))))
    if c == 3:
        for T in range(4):
            if T: M("v_xor_b32 v31, %d, v30" % (32 * T))
            M("ds_read_b64 %s, %s" % (a(aRES + 2 * T, 2), "v31" if T else "v30"))
        M.wait(lg=tg[-1])
        stats_block(M, c)
        M("v_pk_add_f32 v[24:25], v[24:25], v[26:27]")
        M("ds_write_b64 v28, v[24:25]")
    for n, s in enumerate(range(8 * c, 8 * c + 8)):
        M.wait(lg=tg[n])
        M("v_mfma_f32_32x32x16_bf16 %s, %s, %s, %s" % (v(ACC1, 16), a(4 * s, 4), v(XF + 4 * s, 4), "0" if s == 0 else v(ACC1, 16)))
    if c < 3:
        stats_block(M, c)
P.extend(weave(M.ins, b2, after=is_mfma, per=0.75))
P.wait(lg=0)
P("s_barrier")
P("ds_read_b128 v[16:19], v29")
P("ds_read_b128 v[20:23], v29 offset:16")
P("s_lshr_b32 %s, %s, 1" % (sT0, sJ))
P("s_lshr_b32 %s, %s, 1" % (sT1, sT0))
P("s_add_u32 %s, %s, 1" % (sT1, sT1))
P("s_sub_u32 %s, 0, %s" % (sT2, sT1))
P("s_and_b32 %s, %s, 1" % (sT0, sT0))
P("s_cselect_b32 %s, %s, %s" % (sT1, sT2, sT1))
P("s_add_u32 %s, %s, %s" % (sT2, sB, sT1))
P("s_and_b32 %s, %s, 31" % (sFD, sT2))
P("s_lshl_b32 %s, %s, 3" % (sFD, sFD))
P("s_add_u32 %s, %s, %s" % (sFD, sFD, sJ))
P("s_lshl_b32 %s, %s, 7" % (sFD, sFD))
P("s_lshl_b32 %s, %s, 5" % (sT3, sMH))
P("s_add_u32 %s, %s, %s" % (sT2, sT2, sT3))
P("s_ashr_i32 %s, %s, 6" % (sT3, sT2))
P("s_and_b32 %s, %s, 63" % (sT2, sT2))
P("s_lshl_b32 %s, %s, 15" % (sT2, sT2))
P("s_lshl_b32 %s, %s, 12" % (sT4, sJ))
P("s_add_u32 %s, %s, %s" % (sT2, sT2, sT4))
P("s_lshl_b32 %s, %s, 11" % (sT4, sNH))
P("s_add_u32 %s, %s, %s" % (sT2, sT2, sT4))
P("s_add_u32 %s, %s, %d" % (sT2, sT2, WS_A2))
P("v_and_b32 v26, 31, v0")
P("v_add_u32 v26, %s, v26" % sT3)
P("v_cmp_gt_u32 vcc, 32, v26")
P("v_and_b32 v26, 31, v26")
P("v_and_b32 v28, 32, v0")
P("v_add_u32 v28, v28, v26")
P("v_cndmask_b32 v27, 0, -1, vcc")
P("v_lshl_add_u32 v28, v28, 4, %s" % sT2)
P.wait(lg=0)
P("v_pk_add_f32 v[16:17], v[16:17], v[18:19]")
P("v_pk_add_f32 v[20:21], v[20:21], v[22:23]")
P("v_pk_add_f32 v[16:17], v[16:17], v[20:21]")
P("v_mul_f32 v16, %s, v16" % f2h(-1.0 / 512))
P("v_mul_f32 v17, %s, v17" % f2h(1.0 / 512))
P("v_fma_f32 v17, -v16, v16, v17")
P("v_max_f32 v17, 0, v17")
P("v_add_f32 v18, %s, v17" % f2h(EPS))
P("v_rsq_f32 v20, v18")
P("v_rcp_f32 v19, v18")
P("v_pk_fma_f32 %s, %s, v[16:17], %s op_sel_hi:[1,0,1]" % (v(ACC1, 2), v(CS1, 2), v(ACC1, 2)))
P("v_fmaak_f32 v19, v19, v17, %s" % f2h(EPS))
P("v_mul_f32 v21, v16, v20")
P("v_mul_f32 v18, v18, v19")
P("v_rsq_f32 v19, v18")
P("v_sqrt_f32 v17, v18")
P("v_pk_fma_f32 %s, %s, v[16:17], %s op_sel_hi:[1,0,1]" % (v(ACC1 + 2, 2), v(CS1 + 2, 2), v(ACC1 + 2, 2)))
P("v_mul_f32 v18, v19, v19")
P("v_mul_f32 v23, %s, v19" % f2h(K0))
P("v_mul_f32 v18, v18, v19")
P("v_mul_f32 v22, %s, v18" % f2h(K1))
for k in range(2, 8):
    P("v_pk_fma_f32 %s, %s, v[16:17], %s op_sel_hi:[1,0,1]" % (v(ACC1 + 2 * k, 2), v(CS1 + 2 * k, 2), v(ACC1 + 2 * k, 2)))

def gelu_pairs(p, pairs, cc, iv):
    for z, t, d in pairs: p("v_pk_mul_f32 %s, %s, %s" % (v(t, 2), v(z, 2), v(z, 2)))
    for z, t, d in pairs: p("v_pk_fma_f32 %s, %s, %s, %s op_sel:[0,0,1] op_sel_hi:[1,0,1]" % (v(t, 2), v(t, 2), v(cc, 2), v(cc, 2)))
    for z, t, d in pairs: p("v_pk_mul_f32 %s, %s, %s" % (v(t, 2), v(t, 2), v(z, 2)))
    for z, t, d in pairs: p("v_exp_f32 %s, %s" % (v(t), v(t))); p("v_exp_f32 %s, %s" % (v(t + 1), v(t + 1)))
    for z, t, d in pairs: p("v_pk_fma_f32 %s, %s, %s, %s op_sel:[0,1,1] op_sel_hi:[1,1,1]" % (v(t, 2), v(t, 2), v(iv, 2), v(iv, 2)))
    for z, t, d in pairs: p("v_rcp_f32 %s, %s" % (v(t), v(t))); p("v_rcp_f32 %s, %s" % (v(t + 1), v(t + 1)))
    for z, t, d in pairs: p("v_pk_mul_f32 %s, %s, %s" % (v(t, 2), v(t, 2), v(z, 2)))
    for z, t, d in pairs: p("v_cvt_pk_bf16_f32 %s, %s, %s" % (v(d), v(t), v(t + 1)))

tH = None
for u in range(2):
    prs = []
    for n, g in enumerate((u, u + 2)):
        for k in range(2):
            prs.append((ACC1 + 4 * g + 2 * k, CS1 + 4 * g + 2 * k, 8 + 4 * u + 2 * n + k))
    gelu_pairs(P, prs, 22, 16)
    for k in range(4): P("v_and_b32 %s, v27, %s" % (v(8 + 4 * u + k), v(8 + 4 * u + k)))
    tH = P.tagged("buffer_store_dwordx4 %s, v28, %s, 0 offen offset:%d sc1" % (v(8 + 4 * u, 4), SWS, 1024 * u))
stamp(P)
P("v_cmp_gt_u32 vcc, 32, v0")
P("s_lshl_b32 %s, %s, 8" % (sT0, sW))
P("s_add_u32 %s, %s, %d" % (sT0, sT0, L_FIN))
P("v_lshl_add_u32 v29, v0, 2, %s" % sT0)
P("v_cndmask_b32 v20, v21, v20, vcc")
P("ds_write_b32 v29, v20")
ZA, ZB = 32, 48
vB3 = 16
fill = []
q = Prog()
q("s_mul_i32 %s, %s, 224" % (sT1, sM))
q("s_mov_b32 %s, 0x%x" % (sT2, 4682))
fill.append(q.ins)
for i in range(7):
    q = Prog()
    q("v_add_u32 v24, %d, v0" % (64 * i))
    q("v_mul_u32_u24 v25, %s, v24" % sT2)
    q("v_lshrrev_b32 v25, 16, v25")
    q("v_mul_u32_u24 v25, %d, v25" % (3584 - 224))
    q("v_lshl_add_u32 v25, v24, 4, v25")
    q("v_add_u32 %s, %s, v25" % (v(vB3 + i), sT1))
    if i & 3: q("v_subrev_u32 %s, %d, %s" % (v(vB3 + i), 1024 * (i & 3), v(vB3 + i)))
    fill.append(q.ins)
def b3_round(gexpr):
    gs = []
    for i in range(7):
        q = Prog()
        if i == 0:
            for e in gexpr: q(e)
            q("s_mul_i32 %s, %s, 114688" % (sOFF, sT3))
            q("s_mul_i32 %s, %s, 7168" % (sT3, sT3))
            q("s_add_u32 m0, %s, %d" % (sT3, L_B3))
        if i == 4: q("s_add_u32 m0, m0, 4096")
        t = q.tagged("buffer_load_dwordx4 %s, %s, %s offen offset:%d lds" % (v(vB3 + i), SW3, sOFF, 1024 * (i & 3)))
        gs.append(q.ins)
    return gs, t
for r in range(2):
    g, t = b3_round(["s_add_u32 %s, %s, %d" % (sT3, sW, 3 + 4 * r)]); fill += g
M = Prog()
for s in range(32):
    acc = ZA if (s & 1) == 0 else ZB
    ss = (s >> 1) + 16 * (s & 1)
    M("v_mfma_f32_32x32x16_bf16 %s, %s, %s, %s" % (v(acc, 16), v(XF + 4 * ss, 4), v(BD + 4 * (s >> 1), 4), "0" if s < 2 else v(acc, 16)))
P.extend(weave(M.ins, fill, after=is_mfma, per=0.75))
P("v_or_b32 v24, %s, v0" % sW)
P("v_mov_b32 v25, 0x%x" % OOB)
P("v_cmp_eq_u32 vcc, 0, v24")
P("v_mov_b32 v24, %d" % WS_FLAG)
P.wait(vm=tE)
P("v_add_u32 %s, 0x9e3779b9, %s" % (v(vTAG), v(vTAG)))
P("v_cndmask_b32 v1, v25, v24, vcc")
P.wait(vm=tH)
P("s_barrier")
flag_store(P, 0, sFD, 1)
stamp(P)
P("v_bfe_u32 v24, v0, 5, 1")
P("v_lshl_add_u32 v25, v24, 4, %s" % sT0)
for g in range(4):
    P("ds_read_b128 %s, v25 offset:%d" % (v(96 + 4 * g, 4), 32 * g))
P("v_and_b32 v26, 15, v0")
P("s_lshl_b32 %s, %s, 6" % (sT1, sNH))
P("s_add_u32 %s, %s, %s" % (sT1, sT1, sT0))
P("v_lshl_add_u32 v26, v26, 2, %s" % sT1)
tFin = P.tagged("ds_read2_b32 v[30:31], v26 offset0:0 offset1:32")
P("v_lshlrev_b32 v26, 31, v0")
P("v_or_b32 v26, 1.0, v26")
P("v_and_b32 v27, 1, v0")
P("v_lshlrev_b32 v27, 10, v27")
P("v_lshl_add_u32 v27, v24, 8, v27")
P("v_bfe_u32 v28, v0, 1, 4")
P("v_lshl_add_u32 v27, v28, 4, v27")
P("s_lshl_b32 %s, %s, 12" % (sT1, sNH))
P("s_lshl_b32 %s, %s, 11" % (sT2, sMH))
P("s_add_u32 %s, %s, %s" % (sT1, sT1, sT2))
P("s_add_u32 %s, %s, %d" % (sT1, sT1, L_Z))
P("v_add_u32 v27, %s, v27" % sT1)
for k in range(8):
    P("v_pk_fma_f32 %s, %s, v[26:27], %s op_sel_hi:[1,0,1]" % (v(ZA + 2 * k, 2), v(ZB + 2 * k, 2), v(ZA + 2 * k, 2)))
P.wait(lg=tFin)
for k in range(8):
    P("v_pk_mul_f32 %s, %s, %s" % (v(ZA + 2 * k, 2), v(ZA + 2 * k, 2), v(96 + 2 * k, 2)))
for k in range(8):
    P("v_cvt_pk_bf16_f32 %s, %s, %s" % (v(ZB + k), v(ZA + 2 * k), v(ZA + 2 * k + 1)))
P("ds_write_b128 v27, %s" % v(ZB, 4))
P("ds_write_b128 v27, %s offset:512" % v(ZB + 4, 4))
P("v_bfe_u32 v24, v0, 2, 4")
P("v_and_b32 v25, 2, v24")
P("v_bfe_u32 v28, v0, 4, 1")
P("v_or_b32 v25, v25, v28")
P("v_lshlrev_b32 v25, 5, v25")
P("v_and_b32 v28, 3, v0")
P("v_lshl_add_u32 v25, v28, 3, v25")
P("v_lshl_add_u32 v112, v24, 7, v25")
for T in range(1, 4): P("v_xor_b32 %s, %d, v112" % (v(112 + T), 32 * T))
P("v_lshlrev_b32 v29, 4, v0")
P("v_add_u32 v28, %d, v29" % L_Z)
P.wait(lg=0)
P("s_barrier")
def B2F(ks, T):
    n = 4 * ks + T
    return ("a", 4 * n) if n < 32 else ("v", 128 + 4 * (n - 32))
b2r = []; tB2r = {}
for ks in range(16):
    for T in range(4):
        r = B2F(ks, T)
        q = Prog()
        q("ds_read_b64_tr_b16 %s, %s offset:%d" % (R(r, 2), v(112 + T), 4096 * ks))
        tB2r[ks, T] = q.tagged("ds_read_b64_tr_b16 %s, %s offset:%d" % (R((r[0], r[1] + 2), 2), v(112 + T), 4096 * ks + 2048))
        b2r.append(q.ins)
ZF, UA = 64, 96
tz = []
for f in range(8):
    tz.append(P.tagged("ds_read_b128 %s, v28 offset:%d" % (v(ZF + 4 * f, 4), 1024 * f)))
P("v_lshrrev_b32 v24, 4, v0")
P("v_and_b32 v25, 15, v0")
P("v_lshlrev_b32 v24, 17, v24")
P("v_lshl_add_u32 v27, v25, 3, v24")
P("s_lshl_b32 %s, %s, 19" % (sT1, sW))
P("s_lshl_b32 %s, %s, 7" % (sT2, sCU))
P("s_add_u32 %s, %s, %s" % (sT1, sT1, sT2))
P("s_add_u32 %s, %s, %d" % (sT1, sT1, WS_U))
P("v_add_u32 v27, %s, v27" % sT1)
P.wait(lg=tz[-1])
M = Prog()
for step in range(4):
    ab, mh2 = step >> 1, step & 1
    for par in range(2):
        for im in range(2):
            Fr = (aFC if ab == im else (aFP if ab == 1 else aFN)) + 4 * mh2
            acc = UA + 8 * par + 4 * im
            M("v_mfma_f32_16x16x32_bf16 %s, %s, %s, %s" % (v(acc, 4), a(Fr, 4), v(ZF + 4 * (4 * ab + 2 * mh2 + par), 4), "0" if step == 0 else v(acc, 4)))
P.extend(weave(M.ins, b2r[:16], after=is_mfma))
ACC2 = 32
for T in range(4):
    for k in range(2):
        P("v_accvgpr_read_b32 v24, %s" % a(aRES + 2 * T + k))
        P("v_and_b32 %s, 0xffff0000, v24" % v(ACC2 + 4 * T + 2 * k + 1))
        P("v_lshlrev_b32 %s, 16, v24" % v(ACC2 + 4 * T + 2 * k))
        P.extend(b2r[16 + 2 * T + k])
for r in range(4):
    P("v_cvt_pk_bf16_f32 %s, %s, %s" % (v(48 + 2 * r), v(UA + r), v(UA + 4 + r)))
    P("v_cvt_pk_bf16_f32 %s, %s, %s" % (v(49 + 2 * r), v(UA + 8 + r), v(UA + 12 + r)))
    if r == 3: P("v_add_u32 v27, 0x18000, v27")
    P("buffer_store_dwordx2 %s, v27, %s, %s offen sc1" % (v(48 + 2 * r, 2), SWS, C(8 * r) if r < 3 else "0"))
for k in range(8):
    P("v_pk_fma_f32 %s, %s, v[30:31], v[30:31] op_sel:[0,0,1] op_sel_hi:[1,0,1]" % (v(ACC2 + 2 * k, 2), v(ACC2 + 2 * k, 2)))
P("v_lshrrev_b32 v24, 4, v0")
P("v_and_b32 v25, 15, v0")
P("v_lshlrev_b32 v24, 9, v24")
P("v_lshl_add_u32 v23, v25, 4, v24")
P("s_lshl_b32 %s, %s, 5" % (sT1, sMH))
P("s_add_u32 %s, %s, %s" % (sT1, sT1, sB))
P("s_lshl_b32 %s, %s, 15" % (sT4, sT1))
P("s_lshl_b32 %s, %s, 8" % (sT2, sNH))
P("s_add_u32 %s, %s, %s" % (sT4, sT4, sT2))
P("s_add_u32 %s, %s, %d" % (sT2, sT4, WS_A2))
P("v_add_u32 v26, %s, v23" % sT2)
P("v_lshrrev_b32 v24, 3, v0")
P("s_lshl_b32 %s, %s, 10" % (sT2, sB))
P("s_add_u32 %s, %s, %d" % (sT2, sT2, WS_FLAG))
P("v_lshl_add_u32 v25, v24, 7, %s" % sT2)
for g in b2r[24:40]: P.extend(g)
stamp(P)
spin(P, 25)
stamp(P)
aA2 = 164
tA2 = []; ld = []
for ks in range(16):
    q = Prog()
    tA2.append(q.tagged("buffer_load_dwordx4 %s, v26, %s, %s offen offset:%d sc1" % (a(aA2 + 4 * ks, 4), SWS, C(ks >> 1), 2048 * (ks & 1))))
    ld.append(q.ins)
main = sum(ld, [])
P.extend(weave(main, b2r[40:], after=is_vmem, per=1.5))
P.wait(lg=0)
P("s_barrier")
late = []
g, t = b3_round(["s_cmp_eq_u32 %s, 3" % sW, "s_cselect_b32 %s, 11, %s" % (sT3, sW)]); late += g
g, tB3 = b3_round(["s_add_u32 %s, %s, 12" % (sT3, sW)]); late += g
M = Prog()
for ks in range(16):
    M.wait(vm=tA2[ks])
    for T in range(4):
        M("v_mfma_f32_16x16x32_bf16 %s, %s, %s, %s" % (v(ACC2 + 4 * T, 4), R(B2F(ks, T), 4), a(aA2 + 4 * ks, 4), v(ACC2 + 4 * T, 4)))
P.extend(weave(M.ins, late, after=is_mfma, per=0.25))
P("s_lshl_b32 %s, %s, 12" % (sT2, sJ))
P("s_add_u32 %s, %s, %s" % (sT2, sT2, sT4))
P("s_add_u32 %s, %s, %d" % (sT2, sT2, WS_A3))
P("v_add_u32 v26, %s, v23" % sT2)
P("s_lshl_b32 %s, %s, 11" % (sT2, sT1))
P("s_lshl_b32 %s, %s, 8" % (sT3, sJ))
P("s_add_u32 %s, %s, %s" % (sT2, sT2, sT3))
P("s_lshl_b32 %s, %s, 6" % (sT3, sNH))
P("s_add_u32 %s, %s, %s" % (sT2, sT2, sT3))
P("s_add_u32 %s, %s, %d" % (sT2, sT2, WS_S2))
P("v_lshl_add_u32 v27, v0, 2, %s" % sT2)
P("v_lshlrev_b32 v24, 26, v0")
P("v_and_b32 v24, 0x40000000, v24")
P("v_or_b32 v27, v27, v24")
P("v_mov_b32 v28, 0"); P("v_mov_b32 v29, 0"); P("v_mov_b32 v30, 0"); P("v_mov_b32 v31, 0")
for u in range(2):
    for k in range(4):
        P("v_cvt_pk_bf16_f32 %s, %s, %s" % (v(vX1 + 4 * u + k), v(ACC2 + 8 * u + 2 * k), v(ACC2 + 8 * u + 2 * k + 1)))
    P("buffer_store_dwordx4 %s, v26, %s, 0 offen offset:%d sc1" % (v(vX1 + 4 * u, 4), SWS, 2048 * u))
for k in range(8):
    P("v_dot2c_f32_bf16 %s, %s, %s" % (v(28 + 2 * (k & 1)), sONE, v(vX1 + k)))
    P("v_dot2c_f32_bf16 %s, %s, %s" % (v(29 + 2 * (k & 1)), v(vX1 + k), v(vX1 + k)))
P("v_pk_add_f32 v[28:29], v[28:29], v[30:31]")
P("v_permlane32_swap_b32 v28, v29")
P("v_add_f32 v28, v28, v29")
P("v_mov_b32 v29, v28")
P("v_permlane16_swap_b32 v28, v29")
P("v_add_f32 v28, v28, v29")
tS2 = P.tagged("buffer_store_dword v28, v27, %s, 0 offen sc1" % SWS)
stamp(P)
P("s_mul_i32 %s, %s, 12288" % (sFSL, sW))
P("s_mul_i32 %s, %s, 28672" % (sR3, sW))
P("s_add_u32 %s, %s, %d" % (sR3, sR3, L_B3))
P("s_mul_i32 %s, %s, %d" % (sK4, sW, 448 * 1024))
def b4_dma(k0, k1, sbase, off):
    gs = []; tags = {}
    n = 0
    for pi in range(2 * k0, 2 * k1):
        q = Prog()
        i = n & 3
        if i == 0:
            q("s_add_u32 %s, %s, %d" % (sOFF, sK4, pi * 8192))
            q("s_add_u32 m0, %s, %d" % (sbase, off + 1024 * n))
        t = q.tagged("buffer_load_dwordx4 %s, %s, %s offen offset:%d lds" % (v(vW + i), SW4, sOFF, 1024 * i))
        tags[pi >> 1] = t
        gs.append(q.ins); n += 1
    return gs, tags
def B4F(k, nh):
    return (128 + 8 * k + 4 * nh) if k < 12 else (8 * (k - 12) + 4 * nh)
vT4 = 120
def b4_read(k, base, off):
    gs = []
    for nh in range(2):
        q = Prog()
        q("ds_read_b64_tr_b16 %s, %s offset:%d" % (a(B4F(k, nh), 2), v(base + 2 * nh), off))
        q("ds_read_b64_tr_b16 %s, %s offset:%d" % (a(B4F(k, nh) + 2, 2), v(base + 2 * nh + 1), off))
        gs.append(q.ins)
    return gs
g, tR1 = b4_dma(0, 5, sFSL, 0)
Sx = Prog()
tr32_bases(Sx, vT4, 24, None)
Sx("v_xor_b32 %s, 64, %s" % (v(vT4 + 2), v(vT4)))
Sx("v_xor_b32 %s, 64, %s" % (v(vT4 + 3), v(vT4 + 1)))
for i in range(4):
    Sx("v_add_u32 %s, %s, %s" % (v(vT4 + 4 + i), sR3, v(vT4 + i)))
    Sx("v_add_u32 %s, %s, %s" % (v(vT4 + i), sFSL, v(vT4 + i)))
Sx("v_bfe_u32 v24, v0, 2, 4")
Sx("v_mul_u32_u24 v24, 224, v24")
Sx("v_and_b32 v25, 3, v0")
Sx("v_lshl_add_u32 v24, v25, 3, v24")
Sx("v_add_u32 v116, %d, v24" % L_B3)
Sx("v_add_u32 v117, %d, v24" % (L_B3 + 8 * 7168))
Sx("v_add_u32 v118, %s, v24" % sR3)
for i in range(4): Sx("v_mov_b32 %s, %s" % (v(28 + i), sONE))
Sx("s_lshl_b32 %s, %s, 7" % (sFD, sCU))
Sx("s_add_u32 %s, %s, 32768" % (sFD, sFD))
P.extend(weave(sum(g, []), [Sx.ins[i:i + 4] for i in range(0, len(Sx.ins), 4)], after=is_vmem))
P.wait(vm=tS2)
P("s_barrier")
flag_store(P, 1, sFD, 1)
stamp(P)
ACC3, CS3, BB = 32, 88, 128
M = Prog()
for kk in range(4):
    tg = []
    for T in range(7):
        r = BB + 28 * kk + 4 * T
        M("ds_read_b64_tr_b16 %s, v118 offset:%d" % (v(r, 2), kk * 7168 + T * 32))
        tg.append(M.tagged("ds_read_b64_tr_b16 %s, v118 offset:%d" % (v(r + 2, 2), kk * 7168 + 3584 + T * 32)))
    for T in range(7):
        M.wait(lg=tg[T])
        M("v_mfma_f32_16x16x32_bf16 %s, %s, v[28:31], %s" % (v(CS3 + 4 * T, 4), v(BB + 28 * kk + 4 * T, 4), "0" if kk == 0 else v(CS3 + 4 * T, 4)))
P.extend(M)
P("v_and_b32 v25, 48, v0")
P("v_add_u32 v24, %s, v25" % sFSL)
P("s_mov_b32 exec_lo, 0x00010001")
P("s_mov_b32 exec_hi, 0x00010001")
for T in range(7):
    P("ds_write_b128 v24, %s offset:%d" % (v(CS3 + 4 * T, 4), 10240 + 64 * T))
P("s_mov_b64 exec, -1")
P("s_lshl_b32 %s, %s, 1" % (sT1, sPG))
P("s_add_u32 %s, %s, %s" % (sT1, sT1, sMH))
P("s_lshl_b32 %s, %s, 5" % (sT2, sNH))
P("s_add_u32 %s, %s, %s" % (sHB3, sT1, sT2))
P("s_lshl_b32 %s, %s, 15" % (sT2, sHB3))
P("s_add_u32 %s, %s, %d" % (sT2, sT2, WS_A3))
P("v_add_u32 v26, %s, v23" % sT2)
P("s_lshl_b32 %s, %s, 11" % (sT2, sHB3))
P("s_add_u32 %s, %s, %d" % (sT2, sT2, WS_S2))
P("v_lshl_add_u32 v27, v0, 2, %s" % sT2)
P("v_lshrrev_b32 v24, 3, v0")
P("s_lshl_b32 %s, %s, 10" % (sT2, sT1))
P("s_add_u32 %s, %s, %d" % (sT2, sT2, WS_FLAG + 32768))
P("v_lshl_add_u32 v119, v24, 7, %s" % sT2)
P.wait(lg=0)
P("s_barrier")
for w2 in range(4):
    for T in range(7):
        P("ds_read_b128 %s, v25 offset:%d" % (v(BB + 28 * w2 + 4 * T, 4), 12288 * w2 + 10240 + 64 * T))
P.wait(lg=0)
for k in range(14):
    P("v_pk_add_f32 %s, %s, %s" % (v(BB + 2 * k, 2), v(BB + 2 * k, 2), v(BB + 28 + 2 * k, 2)))
    P("v_pk_add_f32 %s, %s, %s" % (v(BB + 56 + 2 * k, 2), v(BB + 56 + 2 * k, 2), v(BB + 84 + 2 * k, 2)))
for k in range(14):
    P("v_pk_add_f32 %s, %s, %s" % (v(CS3 + 2 * k, 2), v(BB + 2 * k, 2), v(BB + 56 + 2 * k, 2)))
P.wait(vm=tR1[4])
for k in range(5):
    for g in b4_read(k, vT4, 2048 * k): P.extend(g)
P("s_barrier")
stamp(P)
spin(P, 119)
stamp(P)
tA3 = {}; ld = []
for ks in range(16):
    for th in range(2):
        q = Prog()
        tA3[ks, th] = q.tagged("buffer_load_dwordx4 %s, v26, %s, %s offen offset:%d sc1" % (a(8 * ks + 4 * th, 4), SWS, C(ks >> 1), 2048 * (ks & 1) + 256 * th))
        ld.append(q.ins)
ST = 184
for jj in range(8):
    q = Prog()
    tSt = q.tagged("buffer_load_dword %s, v27, %s, 0 offen offset:%d sc1" % (v(ST + jj), SWS, 256 * jj))
    ld.append(q.ins)
g, tR2 = b4_dma(5, 11, sFSL, 0)
ld += g
def b3_reads(ks):
    gs = []; tg = []
    for T in range(7):
        r = BB + 28 * (ks & 1) + 4 * T
        base = 116 + (ks >> 3)
        q = Prog()
        q("ds_read_b64_tr_b16 %s, %s offset:%d" % (v(r, 2), v(base), (ks & 7) * 7168 + T * 32))
        gs.append(q.ins)
        q = Prog()
        tg.append(q.tagged("ds_read_b64_tr_b16 %s, %s offset:%d" % (v(r + 2, 2), v(base), (ks & 7) * 7168 + 3584 + T * 32)))
        gs.append(q.ins)
    return gs, tg
PRE = 12
gs, tg = b3_reads(0)
P.extend(weave(sum(ld[:PRE], []), gs, after=is_vmem, per=2))
M = []
for ks in range(16):
    q = Prog()
    for T in range(7):
        for th in range(2):
            q.wait(vm=tA3[ks, th] if T == 0 else None, lg=tg[T] if th == 0 else None)
            acc = ACC3 + 28 * th + 4 * T
            q("v_mfma_f32_16x16x32_bf16 %s, %s, %s, %s" % (v(acc, 4), v(BB + 28 * (ks & 1) + 4 * T, 4), a(8 * ks + 4 * th, 4), "0" if ks == 0 else v(acc, 4)))
    if ks < 15:
        gs, tg = b3_reads(ks + 1)
        M += weave(q.ins, gs, after=is_mfma)
    else:
        M += q.ins
P.extend(weave(M, ld[PRE:], after=is_mfma, per=0.25))
P("s_barrier")
stamp(P)
P.wait(vm=tSt)
for k in range(2):
    P("v_pk_add_f32 %s, %s, %s" % (v(ST + 2 * k, 2), v(ST + 2 * k, 2), v(ST + 4 + 2 * k, 2)))
P("v_pk_add_f32 %s, %s, %s" % (v(ST, 2), v(ST, 2), v(ST + 2, 2)))
P("v_add_f32 v16, %s, %s" % (v(ST), v(ST + 1)))
P("v_mov_b32 v17, v16")
P("v_permlane32_swap_b32 v16, v17")
P("v_mul_f32 v16, %s, v16" % f2h(-1.0 / 512))
P("v_mul_f32 v17, %s, v17" % f2h(1.0 / 512))
P("v_fma_f32 v17, -v16, v16, v17")
P("v_max_f32 v17, 0, v17")
P("v_add_f32 v17, %s, v17" % f2h(EPS))
P("v_rsq_f32 v19, v17")
P("v_sqrt_f32 v17, v17")
P("v_mov_b32 v20, v16")
P("v_mul_f32 v18, v19, v19")
P("v_mul_f32 v18, v18, v19")
P("v_mul_f32 v19, %s, v19" % f2h(K0))
P("v_mul_f32 v18, %s, v18" % f2h(K1))
P("v_mov_b32 v21, v17")
P("v_mov_b32 v25, v19")
P("v_mov_b32 v24, v18")
P("v_permlane16_swap_b32 v16, v20")
P("v_permlane16_swap_b32 v17, v21")
P("v_permlane16_swap_b32 v19, v25")
P("v_permlane16_swap_b32 v18, v24")
P("s_mul_i32 %s, %s, 114688" % (sT2, sHB3))
P("s_mul_i32 %s, %s, 7168" % (sT3, sM))
P("s_add_u32 %s, %s, %s" % (sT2, sT2, sT3))
P("s_add_u32 %s, %s, %d" % (sT2, sT2, WS_H))
P("v_lshl_add_u32 v26, v0, 4, %s" % sT2)
P("s_lshl_b32 %s, %s, 13" % (sT2, sW))
P("s_add_u32 %s, %s, %d" % (sT2, sT2, WS_FLAG + 32768))
P("v_lshl_add_u32 v27, v0, 7, %s" % sT2)
P.wait(vm=tR2[10])
for k in range(5, 11):
    for g in b4_read(k, vT4, 2048 * (k - 5)): P.extend(g)
g3b, tR3b = b4_dma(17, 28, sR3, 0)
g3a, tR3a = b4_dma(11, 17, sFSL, 0)
E = Prog()
for T in range(7):
    tmp = 128 + 8 * (T & 1); out = 144 + 4 * (T & 1)
    for th in range(2):
        for k in range(2):
            z = ACC3 + 28 * th + 4 * T + 2 * k
            E("v_pk_fma_f32 %s, %s, %s, %s op_sel_hi:[1,0,1]" % (v(z, 2), v(CS3 + 4 * T + 2 * k, 2), v(16 + 4 * th, 2), v(z, 2)))
    q = [Prog(), Prog()]
    for th in range(2):
        gelu_pairs(q[th], [(ACC3 + 28 * th + 4 * T + 2 * k, tmp + 4 * th + 2 * k, out + 2 * th + k) for k in range(2)], 18 if th == 0 else 24, 16 + 4 * th)
    n = len(q[0].ins)
    for i in range(0, n, 2):
        E.extend(q[0].ins[i:i + 2]); E.extend(q[1].ins[i:i + 2])
    E("v_permlane16_swap_b32 %s, %s" % (v(out), v(out + 2)))
    E("v_permlane16_swap_b32 %s, %s" % (v(out + 1), v(out + 3)))
    tHs = E.tagged("buffer_store_dwordx4 %s, v26, %s, %s offen offset:%d sc1" % (v(out, 4), SWS, C(T >> 2), 1024 * (T & 3)))
is_exp = lambda i: i.t is not None and i.t.startswith("v_exp")
P.extend(weave(E.ins, g3b, after=is_exp, per=0.5))
tPo = P.tagged("buffer_load_dword %s, v27, %s, 0 offen sc1" % (v(vPOLL), SWS))
stamp(P)
P.wait(lg=0)
aG, aU = 224, 240
Gp = Prog()
Gp("s_lshl_b32 %s, %s, 5" % (sT1, sMH))
Gp("s_add_u32 %s, %s, %s" % (sT1, sT1, sB))
Gp("s_cmp_eq_u32 %s, 0" % sT1)
Gp("s_cselect_b32 %s, 32, 31" % sT2)
Gp("s_sub_u32 %s, 64, %s" % (sT3, sT1))
Gp("s_and_b32 %s, %s, 63" % (sT3, sT3))
Gp("s_cmp_lt_u32 %s, 4" % sJ)
Gp("s_cselect_b32 %s, %s, %s" % (sT3, sT1, sT3))
Gp("s_cselect_b64 vcc, -1, 0")
Gp("v_and_b32 v16, 31, v0")
Gp("v_sub_u32 v17, %s, v16" % sT2)
Gp("v_cndmask_b32 v17, v17, v16, vcc")
Gp("v_cvt_f32_u32 v17, v17")
Gp("v_bfe_u32 v18, v0, 5, 1")
Gp("v_mul_f32 v17, %s, v17" % f2h(1.0 / 32))
Gp("v_cvt_f32_u32 v19, v18")
Gp("v_mul_f32 v19, 4.0, v19")
Gp("v_mul_f32 v19, v19, v17")
Gp("s_lshl_b32 %s, %s, 6" % (sT4, sJ))
Gp("s_lshl_b32 %s, %s, 5" % (sT5, sNH))
Gp("s_add_u32 %s, %s, %s" % (sT4, sT4, sT5))
Gp("v_add_u32 v16, %s, v16" % sT4)
Gp("v_sub_u32 v20, 0, v16")
Gp("v_and_b32 v20, 0xff, v20")
Gp("v_cndmask_b32 v20, v20, v16, vcc")
Gp("v_lshlrev_b32 v20, 2, v20")
Gp("v_lshl_add_u32 v20, v18, 12, v20")
Gp("s_lshl_b32 %s, %s, 15" % (sT3, sT3))
Gp("s_add_u32 %s, %s, %d" % (sT3, sT3, WS_U))
Gp("v_add_u32 v20, %s, v20" % sT3)
Gp("v_mov_b32 v21, 0x%x" % OOB)
Gp("v_cmp_eq_u32 vcc, 0, v16")
Gp("v_cndmask_b32 v28, v20, v21, vcc")
gg = [Gp.ins]
for ks in range(4):
    for i in range(4):
        q = Prog()
        q("v_fmamk_f32 v20, v17, %s, v19" % f2h(8 * ks + i))
        q("v_cos_f32 v21, v20"); q("v_sin_f32 v22, v20")
        q("s_nop 0")
        q("v_cvt_pk_bf16_f32 v21, v21, v22")
        q("v_accvgpr_write_b32 %s, v21" % a(aG + 4 * ks + i))
        gg.append(q.ins)
P.extend(weave(sum(g3a, []), gg, after=is_vmem, per=1.5))
P("s_add_u32 %s, %s, 32768" % (sFD, sFD))
spin(P, 27, first=tPo)
P("s_barrier")
flag_store(P, 2, sFD, 1)
P("s_cmp_eq_u32 s2, 0")
P("s_cselect_b32 %s, %d, 0" % (sT4, WS_FLAG))
P("s_cselect_b32 %s, 0, 0x%x" % (sT5, 0x10000000))
P("v_subrev_u32 v16, %s, v1" % sT4)
P("v_or_b32 v16, %s, v16" % sT5)
P("buffer_store_dword %s, v16, %s, 0 offen sc1" % (v(vTAG), SWS))
stamp(P)
tU = None
for ks in range(4):
    for i in range(4):
        tU = P.tagged("buffer_load_dword %s, v28, %s, %s offen offset:%d sc1" % (a(aU + 4 * ks + i), SWS, C(2 * ks), 1024 * i))
XFIN = 112
P("v_lshrrev_b32 v16, 3, v0")
P("v_and_b32 v17, 7, v0")
P("v_lshlrev_b32 v18, 16, v16")
P("v_lshl_add_u32 v18, v17, 4, v18")
P("s_lshl_b32 %s, %s, 19" % (sT2, sW))
P("s_lshl_b32 %s, %s, 7" % (sT3, sCU))
P("s_add_u32 %s, %s, %s" % (sT2, sT2, sT3))
P("v_add_u32 v29, %s, v18" % sT2)
for mh in range(2):
    tXf = P.tagged("buffer_load_dwordx4 %s, v29, %s, %s offen" % (v(XFIN + 4 * mh, 4), SX, C(8 * mh)))
for k in range(17, 28):
    for g in b4_read(k, vT4 + 4, 2048 * (k - 17)): P.extend(g)
P.wait(vm=tR3a[16])
for k in range(11, 17):
    for g in b4_read(k, vT4, 2048 * (k - 11)): P.extend(g)
P("s_mul_i32 %s, %s, 114688" % (sT2, sB))
P("s_mul_i32 %s, %s, 28672" % (sT3, sW))
P("s_add_u32 %s, %s, %s" % (sT2, sT2, sT3))
P("s_add_u32 %s, %s, %d" % (sT2, sT2, WS_H))
P("v_lshl_add_u32 v26, v0, 4, %s" % sT2)
P("v_add_u32 v27, %d, v26" % (32 * 114688))
P("s_lshl_b32 %s, %s, 11" % (sT2, sPG))
P("s_lshl_b32 %s, %s, 9" % (sT3, sW))
P("s_add_u32 %s, %s, %s" % (sT2, sT2, sT3))
P("s_add_u32 %s, %s, %d" % (sT2, sT2, WS_FLAG + 65536))
P("v_lshrrev_b32 v24, 4, v0")
P("v_lshl_add_u32 v25, v24, 7, %s" % sT2)
P("v_and_b32 v18, 31, v0")
P("v_bfe_u32 v19, v0, 5, 1")
P("v_xor_b32 v20, v19, v17")
P("v_lshlrev_b32 v20, 4, v20")
P("v_lshl_add_u32 v20, v18, 8, v20")
P("v_add_u32 v30, %s, v20" % sR3)
P("v_lshlrev_b32 v20, 1, v17")
P("v_xor_b32 v20, v20, v16")
P("v_lshlrev_b32 v20, 4, v20")
P("v_lshl_add_u32 v20, v16, 8, v20")
P("s_lshl_b32 %s, %s, 11" % (sT2, sW))
P("s_add_u32 %s, %s, %d" % (sT2, sT2, L_B3))
P("v_add_u32 v31, %s, v20" % sT2)
P("v_lshlrev_b32 v22, 6, v18")
P("v_lshl_add_u32 v22, v19, 3, v22")
P("v_add_u32 v22, %s, v22" % sR3)
P("v_bfe_u32 v21, v0, 2, 1")
P("v_mul_u32_u24 v21, 28672, v21")
P("v_lshl_add_u32 v21, v16, 6, v21")
P("v_and_b32 v19, 3, v0")
P("v_lshl_add_u32 v21, v19, 4, v21")
P("s_lshl_b32 %s, %s, 9" % (sT2, sW))
P("s_add_u32 %s, %s, %d" % (sT2, sT2, L_B3 + 16384))
P("v_add_u32 v21, %s, v21" % sT2)
P("v_and_b32 v19, 15, v0")
P("v_lshlrev_b32 v19, 7, v19")
P("v_lshl_add_u32 v19, v24, 3, v19")
P("v_add_u32 v24, %s, v19" % sR3)
P("s_mul_i32 %s, %s, 28672" % (sT2, sMH))
P("s_lshl_b32 %s, %s, 10" % (sT3, sNH))
P("s_add_u32 %s, %s, %s" % (sT2, sT2, sT3))
P("s_add_u32 %s, %s, %d" % (sT2, sT2, L_B3 + 18432))
P("v_lshl_add_u32 v20, v0, 4, %s" % sT2)
stamp(P)
spin(P, 25)
stamp(P)
ACC4, YA, RD, RING, NR = 32, 96, 128, 160, 24
tA4 = []; ld = []
for n in range(56):
    mh, i = divmod(n, 28)
    q = Prog()
    tA4.append(q.tagged("buffer_load_dwordx4 %s, %s, %s, %s offen offset:%d sc1" % (v(RING + 4 * (n % NR), 4), v(26 + mh), SWS, C(i >> 2), 1024 * (i & 3))))
    ld.append(q.ins)
Y = Prog()
Y.wait(lg=0)
for ks in range(4):
    Y("v_mfma_f32_32x32x16_bf16 %s, %s, %s, %s" % (v(YA, 16), a(aU + 4 * ks, 4), a(aG + 4 * ks, 4), "0" if ks == 0 else v(YA, 16)))
for T in range(4):
    Y("ds_write_b64 v24, %s offset:%d" % (v(vX1 + 2 * T, 2), 18432 + 32 * T))
for g in range(4):
    Y("v_cvt_pk_bf16_f32 %s, %s, %s" % (v(YA + 4 * g), v(YA + 4 * g), v(YA + 4 * g + 1)))
    Y("v_cvt_pk_bf16_f32 %s, %s, %s" % (v(YA + 4 * g + 1), v(YA + 4 * g + 2), v(YA + 4 * g + 3)))
    Y("ds_write_b64 v22, %s offset:%d" % (v(YA + 4 * g, 2), 16384 + 16 * g))
PRE4 = 16
P.extend(weave(sum(ld[:PRE4], []), [Y.ins[i:i + 3] for i in range(0, len(Y.ins), 3)], after=is_vmem, start=4))
def mf(n):
    mh, i = divmod(n, 28)
    q = Prog()
    q.wait(vm=tA4[n])
    for nh in range(2):
        acc = ACC4 + 32 * mh + 16 * nh
        q("v_mfma_f32_32x32x16_bf16 %s, %s, %s, %s" % (v(acc, 16), a(B4F(i, nh), 4), v(RING + 4 * (n % NR), 4), "0" if i == 0 else v(acc, 16)))
    if n + PRE4 < 56: q.extend(ld[n + PRE4])
    return q.ins
def red_write(mh):
    gs = []
    for nh in range(2):
        for g in range(4):
            q = Prog()
            if g: q("v_xor_b32 v16, %d, v30" % (32 * g))
            q("ds_write_b128 %s, %s offset:%d" % ("v16" if g else "v30", v(ACC4 + 32 * mh + 16 * nh + 4 * g, 4), 8192 * mh + 128 * nh))
            gs.append(q.ins)
    return gs
def fin(mh, pk):
    gs = []
    q = Prog(); q.wait(lg=0); q("s_barrier"); q("v_xor_b32 v16, 16, v31"); q("v_add_u32 v17, %d, v31" % 57344); q("v_add_u32 v18, %d, v16" % 57344); gs.append(q.ins)
    q = Prog()
    tY = q.tagged("ds_read_b128 %s, v21 offset:%d" % (v(YA, 4), 57344 * mh))
    tX1 = q.tagged("ds_read_b128 %s, v20 offset:%d" % (v(YA + 4, 4), 57344 * mh)); gs.append(q.ins)
    tp = []
    for w2 in range(4):
        q = Prog()
        b0, b1 = ("v31", "v16") if w2 < 2 else ("v17", "v18")
        q("ds_read_b128 %s, %s offset:%d" % (v(RD + 8 * w2, 4), b0, 28672 * (w2 & 1) + 8192 * mh))
        tp.append(q.tagged("ds_read_b128 %s, %s offset:%d" % (v(RD + 8 * w2 + 4, 4), b1, 28672 * (w2 & 1) + 8192 * mh)))
        gs.append(q.ins)
    Q = Prog()
    A = ACC4 + 32 * mh
    Q.wait(lg=tX1)
    for k in range(4):
        Q("v_lshlrev_b32 %s, 16, %s" % (v(A + 2 * k), v(YA + 4 + k)))
        Q("v_and_b32 %s, 0xffff0000, %s" % (v(A + 2 * k + 1), v(YA + 4 + k)))
    for w2 in range(4):
        Q.wait(lg=tp[w2])
        if pk:
            for k in range(4): Q("v_pk_add_f32 %s, %s, %s" % (v(A + 2 * k, 2), v(A + 2 * k, 2), v(RD + 8 * w2 + 2 * k, 2)))
        else:
            for k in range(8): Q("v_add_f32 %s, %s, %s" % (v(A + k), v(A + k), v(RD + 8 * w2 + k)))
    for k in range(8): Q("v_mul_f32 %s, %s, %s" % (v(A + 24 + k), f2h(-math.log2(math.e)), v(A + k)))
    for k in range(8):
        Q("v_exp_f32 %s, %s" % (v(A + 24 + k), v(A + 24 + k)))
    for k in range(4):
        Q("v_lshlrev_b32 %s, 16, %s" % (v(A + 8 + 2 * k), v(YA + k)))
        Q("v_and_b32 %s, 0xffff0000, %s" % (v(A + 8 + 2 * k + 1), v(YA + k)))
    for k in range(8): Q("v_add_f32 %s, 1.0, %s" % (v(A + 24 + k), v(A + 24 + k)))
    for k in range(8): Q("v_rcp_f32 %s, %s" % (v(A + 24 + k), v(A + 24 + k)))
    for k in range(4):
        Q("v_lshlrev_b32 %s, 16, %s" % (v(A + 16 + 2 * k), v(XFIN + 4 * mh + k)))
        Q("v_and_b32 %s, 0xffff0000, %s" % (v(A + 16 + 2 * k + 1), v(XFIN + 4 * mh + k)))
    for k in range(8): Q("v_mul_f32 %s, %s, %s" % (v(A + k), v(A + k), v(A + 24 + k)))
    for k in range(8): Q("v_fmac_f32 %s, %s, %s" % (v(A + 16 + k), v(A + k), v(A + 8 + k)))
    for k in range(4): Q("v_cvt_pk_bf16_f32 %s, %s, %s" % (v(A + k), v(A + 16 + 2 * k), v(A + 16 + 2 * k + 1)))
    Q("buffer_store_dwordx4 %s, v29, %s, %s offen" % (v(A, 4), SO, C(8 * mh)))
    gs += [Q.ins[i:i + 4] for i in range(0, len(Q.ins), 4)]
    return gs
for n in range(28): P.extend(mf(n))
M = []
for n in range(28, 56): M += mf(n)
P.extend(weave(M, red_write(0) + fin(0, False), after=is_mfma, start=2))
stamp(P)
for g in red_write(1) + fin(1, True): P.extend(g)
stamp(P)
if STAMP:
    P("s_waitcnt vmcnt(0)")
    stamp(P)
    n = nstamp[0]
    if LEAK:
        P("s_add_u32 %s, s%d, 6000" % (sT2, STAMP_S + LEAK[0]))
        P("L_leak:")
        P("s_memrealtime s[4:5]")
        P("s_waitcnt lgkmcnt(0)")
        P("s_sub_u32 %s, s4, %s" % (sT3, sT2))
        P("s_cmp_lt_i32 %s, 0" % sT3)
        P("s_cbranch_scc1 L_leak")
    assert n <= 22
    for k in range(n):
        P("v_writelane_b32 v16, s%d, %d" % (STAMP_S + k, k))
    P("s_lshl_b32 %s, s2, 2" % sT2)
    P("s_add_u32 %s, %s, %s" % (sT2, sT2, sW))
    P("s_lshl_b32 %s, %s, 8" % (sT2, sT2))
    P("s_add_u32 %s, %s, %d" % (sT2, sT2, WS_STAMP))
    P("v_lshl_add_u32 v17, v0, 2, %s" % sT2)
    P("buffer_store_dword v16, v17, %s, 0 offen" % SWS)
P("L_end:")
P("s_endpgm")

import asmlib
_parse = asmlib.parse
def parse2(t):
    if t.startswith("/*rare*/"): t = t[9:]
    return _parse(t)
asmlib.parse = parse2
lines, nops = finalize(P.ins)
lines = [l[9:] if l.startswith("/*rare*/") else l for l in lines]

hdr = open("cdna_kernels/%s.s.ref" % NAME).read().split("; Override launch")[0]
txt = hdr + "; @launch grid=(256,1,1) block=(256,1,1) lds=%d\n" % LDS_BYTES
txt += """.amdgcn_target "amdgcn-amd-amdhsa--gfx950"
.text
.globl %s_kernel
.p2align 8
.type %s_kernel,@function
%s_kernel:
""" % (NAME, NAME, NAME)
txt += "\n".join(("" if l.endswith(":") else "  ") + l for l in lines) + "\n"
txt += """L_pad:
  .fill (65536 + 64 - (L_pad - L_pc)) / 4, 4, 0xbf800000
.section .rodata,"a"
.p2align 6
.amdhsa_kernel %s_kernel
  .amdhsa_next_free_vgpr 512
  .amdhsa_next_free_sgpr 102
  .amdhsa_accum_offset 256
  .amdhsa_group_segment_fixed_size 0
  .amdhsa_kernarg_size 104
  .amdhsa_user_sgpr_count 2
  .amdhsa_user_sgpr_kernarg_segment_ptr 1
  .amdhsa_system_sgpr_workgroup_id_x 1
.end_amdhsa_kernel
""" % NAME
open(OUT, "w").write(txt)
print("instructions:", sum(1 for l in lines if not l.endswith(":")), "nops inserted:", nops, "stamps:", nstamp[0])
```

```python
import sys, struct, math
from asmlib import *

NAME = "recurrent_scan__spectral_fnet__mixer_s_mlp__prompt"
STAMP = any(a.startswith(("--stamp","--leak")) for a in sys.argv)
LEAK = [int(a[7:]) for a in sys.argv if a.startswith("--leak=")]
OUT = [a for a in sys.argv[1:] if not a.startswith("--")][0]

def f2h(x): return "0x%08x" % struct.unpack("<I", struct.pack("<f", x))[0]
def v(a, n=1): return "v%d" % a if n == 1 else "v[%d:%d]" % (a, a + n - 1)
def a(x, n=1): return "a%d" % x if n == 1 else "a[%d:%d]" % (x, x + n - 1)
def R(r, n=1): return v(r[1], n) if r[0] == "v" else a(r[1], n)

WS_E = 0
WS_FLAG = 0x10000
WS_S2 = 0x40000
WS_STAMP = 0x80000
WS_A2 = 0x200000
WS_A3 = 0x400000
WS_U = 0x600000
WS_H = 0x800000
OOB = 0x7f000000
L_B12 = 0
L_X = 65536
L_B3 = 49152
L_ST = 149504
L_FIN = L_ST + 2048
L_Z = L_FIN + 1024
LDS_BYTES = 163840
SX, SW1, SW2, SW3, SW4, SO, SWS = "s[8:11]", "s[12:15]", "s[16:19]", "s[20:23]", "s[24:27]", "s[28:31]", "s[32:35]"
sB, sJ, sW, sMH, sNH, sM, sPG, sONE, sCNT, sCU = "s36", "s37", "s38", "s39", "s40", "s41", "s42", "s43", "s44", "s45"
sT0, sT1, sT2, sT3, sT4, sT5 = "s46", "s47", "s48", "s49", "s50", "s51"
sOFF = "s52"; sHB3 = "s53"; sFD = "s54"; sNEG = "s55"; sFSL = "s56"; sR3 = "s57"; sK4 = "s58"
def C(k): return "0" if k == 0 else "s%d" % (63 + k)
STAMP_S = 80
vL = 0; vW = 2; vTAG = 6; vPOLL = 7; vX1 = 8
K0 = -2.0 * math.log2(math.e) * math.sqrt(2.0 / math.pi)
K1 = K0 * 0.044715
EPS = 1e-5

P = Prog()
nstamp = [0]
def stamp(p):
    if STAMP:
        k = nstamp[0]; nstamp[0] += 1
        p("s_memrealtime s[%d:%d]" % (4, 5))
        p("s_waitcnt lgkmcnt(0)")
        p("s_mov_b32 s%d, s4" % (STAMP_S + k))
lab = [0]
def spin(p, vaddr, first=None):
    lab[0] += 1
    L = "L_spin%d" % lab[0]
    if first is not None:
        p.wait(vm=first)
        p("v_cmp_ne_u32 vcc, %s, %s" % (v(vPOLL), v(vTAG)))
        p("s_nop 1")
        p("s_cbranch_vccz %s_done" % L)
    p("%s:" % L)
    q = Ins("buffer_load_dword %s, %s, %s, 0 offen sc1" % (v(vPOLL), v(vaddr), SWS))
    if first is None:
        p.ins.append(q)
        p("s_waitcnt vmcnt(0)")
    else:
        p.ins.append(Ins("/*rare*/ " + q.t)); p.ins.append(Ins("/*rare*/ s_waitcnt vmcnt(0)"))
    p("v_cmp_ne_u32 vcc, %s, %s" % (v(vPOLL), v(vTAG)))
    p("s_sub_u32 %s, %s, 1" % (sCNT, sCNT))
    p("s_cbranch_scc1 %s_done" % L)
    p("s_cbranch_vccnz %s" % L)
    p("%s_done:" % L)

def flag_store(p, kind, sidx, vtmp):
    lab[0] += 1
    p("buffer_store_dword %s, %s, %s, %s offen sc1" % (v(vTAG), v(vtmp), SWS, sidx))

P("s_cmp_ge_u32 s2, 0x100")
P("s_cbranch_scc1 L_end")
for s, off in ((12, 48), (8, 0), (32, 96), (16, 56), (20, 64), (24, 72), (28, 80)):
    P("s_load_dwordx2 s[%d:%d], s[0:1], %d" % (s, s + 1, off))
if STAMP:
    P("s_memrealtime s[6:7]")
P("s_getpc_b64 s[4:5]")
P("L_pc:")
P("s_lshr_b32 s3, s2, 3")
P("s_lshl_b32 %s, s3, 11" % sT0)
P("s_add_u32 s4, s4, %s" % sT0)
P("s_addc_u32 s5, s5, 0")
P("v_lshlrev_b32 v16, 3, v0")
P("v_mov_b32 v17, s5")
P("v_add_co_u32 v16, vcc, s4, v16")
P("v_lshrrev_b32 v1, 6, v0")
P("v_and_b32 v0, 63, v0")
P("v_addc_co_u32 v17, vcc, 0, v17, vcc")
P("v_readfirstlane_b32 %s, v1" % sW)
P("global_load_dwordx2 v[30:31], v[16:17], off")
P("s_and_b32 %s, s3, 7" % sJ)
P("s_and_b32 %s, s3, 15" % sM)
P("s_lshr_b32 %s, s3, 3" % sT0)
P("s_and_b32 %s, s2, 7" % sT1)
P("s_lshl_b32 %s, %s, 2" % (sT1, sT1))
P("s_add_u32 %s, %s, %s" % (sB, sT0, sT1))
P("s_lshr_b32 %s, %s, 1" % (sPG, sB))
P("s_lshr_b32 %s, %s, 1" % (sMH, sW))
P("s_and_b32 %s, %s, 1" % (sNH, sW))
P("s_lshl_b32 %s, %s, 3" % (sCU, sB))
P("s_add_u32 %s, %s, %s" % (sCU, sCU, sJ))
for s, n in ((12, 512 * 1024), (8, 2048 * 1024), (32, 1 << 28), (16, 512 * 1024), (20, 512 * 3584), (24, 1792 * 1024), (28, 2048 * 1024)):
    P("s_mov_b32 s%d, 0x%x" % (s + 2, n))
    P("s_mov_b32 s%d, 0x20000" % (s + 3))
P("v_lshrrev_b32 v16, 3, v0")
P("v_and_b32 v17, 2, v16")
P("v_bfe_u32 v18, v0, 5, 1")
P("v_or_b32 v17, v17, v18")
P("v_lshlrev_b32 v17, 1, v17")
P("v_and_b32 v19, 7, v0")
P("v_xor_b32 v17, v17, v19")
P("v_lshlrev_b32 v17, 4, v17")
P("v_lshl_add_u32 v17, v16, 10, v17")
P("s_lshl_b32 %s, %s, 7" % (sT0, sJ))
P("v_add_u32 %s, %s, v17" % (v(vW), sT0))
for i in range(1, 4):
    P("v_add_u32 %s, %d, %s" % (v(vW + i), 7168 * i, v(vW)))
P("s_lshl_b32 %s, %s, 4" % (sT0, sNH))
P("v_add_u32 v22, %s, v16" % sT0)
P("s_lshl_b32 %s, %s, 5" % (sT1, sMH))
P("s_add_u32 %s, %s, %s" % (sT1, sT1, sB))
P("s_lshl_b32 %s, %s, 10" % (sT2, sT1))
P("v_lshlrev_b32 v22, 16, v22")
P("v_add_u32 v22, %s, v22" % sT2)
P("v_lshrrev_b32 v23, 1, v16")
P("v_xor_b32 v23, v23, v19")
P("v_lshl_add_u32 v20, v23, 4, v22")
P("v_xor_b32 v21, 64, v20")
P("v_add_u32 v21, %d, v21" % (8 * 65536 - 1024))
P("s_lshl_b32 %s, %s, 15" % (sOFF, sW))
P("s_lshl_b32 m0, %s, 12" % sW)
P("s_waitcnt lgkmcnt(0)")
if STAMP:
    P("s_mov_b32 s%d, s6" % (STAMP_S + 0)); nstamp[0] = 1

def w_dma_round(srd, r, first_setup=True):
    g = []
    for i in range(4):
        q = Prog()
        t = q.tagged("buffer_load_dwordx4 %s, %s, %s offen offset:%d lds" % (v(vW + i), srd, sOFF, 1024 * i))
        if i == 3 and r < 3:
            q("s_add_u32 %s, %s, 0x20000" % (sOFF, sOFF))
            q("s_add_u32 m0, m0, 0x4000")
        g.append(q.ins)
    return g, t

dma = []; tB1 = []; tX = []
for r in range(4):
    g, t = w_dma_round(SW1, r); dma += g; tB1.append(t)
for kc in range(8):
    q = Prog()
    if kc == 0:
        q("s_lshl_b32 %s, %s, 11" % (sT0, sW))
        q("s_add_u32 m0, %s, %d" % (sT0, L_X))
    else:
        q("s_add_u32 m0, m0, %d" % (8192 - 128))
    q("buffer_load_dwordx4 v20, %s, 0 offen offset:%d lds" % (SX, kc * 128))
    dma.append(q.ins)
    q = Prog()
    t = q.tagged("buffer_load_dwordx4 v21, %s, 0 offen offset:%d lds" % (SX, kc * 128 + 1024))
    dma.append(q.ins); tX.append(t)

BD = 64
S = Prog()
S("v_and_b32 v22, 31, v0")
S("s_lshl_b32 %s, %s, 5" % (sT3, sJ))
S("v_add_u32 v22, %s, v22" % sT3)
S("v_mov_b32 v23, 0x100")
S("v_cmp_eq_u32 vcc, 0, v22")
S("v_cvt_f32_u32 v25, v18")
S("s_mul_i32 %s, %s, 0x3e800000" % (sT3, sNH))
S("v_cndmask_b32 v22, v22, v23, vcc")
S("v_cvt_f32_u32 v24, v22")
S("v_mul_f32 v24, %s, v24" % f2h(1.0 / 512))
S("v_mul_f32 v25, 0x41000000, v25")
S("v_fma_f32 v26, v25, v24, %s" % sT3)
S("v_add_f32 v27, v26, v24")
S("v_mul_f32 v25, %s, v24" % f2h(10.0))
S("v_add_f32 v24, v24, v24")
trig = [[i] for i in S.ins]
for s in range(16):
    for k in range(4):
        q = Prog()
        q("v_cos_f32 v28, v26"); q("v_cos_f32 v29, v27")
        d = "v25" if k == 3 else "v24"
        q("v_add_f32 v26, v26, %s" % d); q("v_add_f32 v27, v27, %s" % d)
        q("v_cvt_pk_bf16_f32 %s, v28, v29" % v(BD + 4 * s + k))
        trig.append(q.ins)
main = []
for g in dma: main += g
body = weave(main, [sum(trig[:15], [])] + trig[15:], after=is_vmem, start=6, per=2)
P.extend(body)
P("v_lshrrev_b32 v22, 4, v0")
P("v_lshlrev_b32 v22, 15, v22")
P("v_and_b32 v23, 15, v0")
P("v_lshl_add_u32 v22, v23, 7, v22")
P("s_lshl_b32 %s, %s, 11" % (sT0, sPG))
P("s_add_u32 %s, %s, %d" % (sT0, sT0, WS_FLAG))
P("v_mov_b32 v23, 0")
tE = P.tagged("buffer_load_dword %s, v23, %s, 0 offen sc1" % (v(vTAG), SWS))
P("buffer_load_dword %s, v22, %s, %s offen sc1" % (v(vPOLL), SWS, sT0))
for k in range(1, 17):
    P("s_mov_b32 %s, %d" % (C(k), 4096 * k))
P("s_mov_b32 %s, 0x3f803f80" % sONE)
P("s_mov_b32 %s, 0x80008000" % sNEG)
P("s_mov_b32 %s, 0x40000" % sCNT)
def tr32_bases(p, d0, tmp, nh_sgpr):
    t0, t1, t2 = tmp, tmp + 1, tmp + 2
    p("v_bfe_u32 %s, v0, 2, 2" % v(t0))
    p("v_bfe_u32 %s, v0, 5, 1" % v(t1))
    p("v_lshl_add_u32 %s, %s, 3, %s" % (v(t1), v(t1), v(t0)))
    p("v_bfe_u32 %s, v0, 4, 1" % v(t2))
    p("v_and_b32 %s, 2, %s" % (v(t0), v(t0)))
    p("v_xor_b32 %s, %s, %s" % (v(t2), v(t2), v(t0)))
    if nh_sgpr is not None:
        p("s_lshl_b32 %s, %s, 1" % (sT5, nh_sgpr))
        p("v_xor_b32 %s, %s, %s" % (v(t2), sT5, v(t2)))
    p("v_lshlrev_b32 %s, 5, %s" % (v(t2), v(t2)))
    p("v_and_b32 %s, 3, v0" % v(t0))
    p("v_lshl_add_u32 %s, %s, 3, %s" % (v(t2), v(t0), v(t2)))
    p("v_lshl_add_u32 %s, %s, 7, %s" % (v(d0), v(t1), v(t2)))
    p("v_xor_b32 %s, 32, %s" % (v(d0 + 1), v(d0)))
    p("v_add_u32 %s, 512, %s" % (v(d0 + 1), v(d0 + 1)))
tr32_bases(P, 16, 22, sNH)
P("v_and_b32 v22, 31, v0")
P("v_bfe_u32 v23, v0, 1, 3")
P("v_bfe_u32 v24, v0, 5, 1")
P("v_xor_b32 v23, v23, v24")
P("v_lshlrev_b32 v23, 4, v23")
P("v_lshl_add_u32 v23, v22, 7, v23")
P("s_lshl_b32 %s, %s, 12" % (sT0, sMH))
P("s_add_u32 %s, %s, %d" % (sT0, sT0, L_X))
P("v_add_u32 v18, %s, v23" % sT0)
for i in range(1, 4):
    P("v_xor_b32 %s, %d, v18" % (v(18 + i), 32 * i))
aONE = 152
for i in range(4):
    P("v_accvgpr_write_b32 %s, %s" % (a(aONE + i), sONE))
P("v_and_b32 v22, 15, v0")
P("s_lshl_b32 %s, %s, 4" % (sT0, sW))
P("v_add_u32 v22, %s, v22" % sT0)
P("v_cvt_f32_u32 v22, v22")
P("v_bfe_u32 v23, v0, 5, 1")
P("v_bfe_u32 v24, v0, 4, 1")
P("v_lshlrev_b32 v23, 10, v23")
P("v_lshl_add_u32 v23, v24, 8, v23")
P("v_add_u32 v23, %s, v23" % sB)
P("v_cvt_f32_u32 v23, v23")
P("v_mul_f32 v23, v23, v22")
P("v_mul_f32 v23, %s, v23" % f2h(1.0 / 2048))
P("v_mul_f32 v22, %s, v22" % f2h(1.0 / 32))
stamp(P)
CS1, ACC1, XF = 32, 48, 128
aFC, aFN, aFP = 128, 136, 144
ftrig = []
for mh2 in range(2):
    for k in range(4):
        i0 = 2 * k
        kk = [((i & 3) + 8 * (i >> 2) + 0.5 * mh2) for i in (i0, i0 + 1)]
        g = lambda *t: [Ins(x) for x in t]
        ftrig.append(g("v_fmamk_f32 v24, v22, %s, v23" % f2h(kk[0]), "v_fmamk_f32 v25, v22, %s, v23" % f2h(kk[1]), "v_cos_f32 v26, v24"))
        ftrig.append(g("v_cos_f32 v27, v25", "v_sin_f32 v28, v24"))
        ftrig.append(g("v_sin_f32 v29, v25", "v_cvt_pk_bf16_f32 v26, v26, v27", "v_cvt_pk_bf16_f32 v28, v28, v29"))
        ftrig.append(g("v_accvgpr_write_b32 %s, v26" % a(aFC + 4 * mh2 + k), "v_xor_b32 v27, %s, v28" % sNEG,
                       "v_accvgpr_write_b32 %s, v28" % a(aFP + 4 * mh2 + k), "v_accvgpr_write_b32 %s, v27" % a(aFN + 4 * mh2 + k)))
M = Prog()
for r in range(4):
    M.wait(vm=tB1[r]); M("s_barrier")
    tg = []
    for s in range(8 * r, 8 * r + 8):
        M("ds_read_b64_tr_b16 %s, v16 offset:%d" % (a(4 * s, 2), 2048 * s))
        tg.append(M.tagged("ds_read_b64_tr_b16 %s, v17 offset:%d" % (a(4 * s + 2, 2), 2048 * s)))
    for n, s in enumerate(range(8 * r, 8 * r + 8)):
        M.wait(lg=tg[n])
        M("v_mfma_f32_32x32x16_bf16 %s, %s, %s, %s" % (v(CS1, 16), a(4 * s, 4), a(aONE, 4), "0" if s == 0 else v(CS1, 16)))
P.extend(weave(M.ins, ftrig, after=is_mfma))
stamp(P)
P("s_lshl_b32 %s, %s, 15" % (sOFF, sW))
P("s_lshl_b32 m0, %s, 12" % sW)
P("v_mov_b32 v24, 0"); P("v_mov_b32 v25, 0"); P("v_mov_b32 v26, 0"); P("v_mov_b32 v27, 0")
b2 = []; tB2 = None
for r in range(4):
    g, tB2 = w_dma_round(SW2, r); b2 += g
P("v_and_b32 v22, 31, v0")
P("v_bfe_u32 v23, v0, 5, 1")
P("s_lshl_b32 %s, %s, 10" % (sT0, sMH))
P("s_add_u32 %s, %s, %d" % (sT0, sT0, L_ST))
P("v_lshl_add_u32 v29, v22, 5, %s" % sT0)
P("s_lshl_b32 %s, %s, 4" % (sT0, sNH))
P("v_lshl_add_u32 v28, v23, 3, v29")
P("v_add_u32 v28, %s, v28" % sT0)
P("v_and_b32 v22, 15, v0")
P("v_bfe_u32 v30, v0, 1, 3")
P("v_xor_b32 v30, v30, v23")
P("v_lshlrev_b32 v30, 4, v30")
P("v_lshl_add_u32 v30, v22, 7, v30")
P("v_bfe_u32 v31, v0, 4, 1")
P("v_lshl_add_u32 v30, v31, 3, v30")
P("s_lshl_b32 %s, %s, 11" % (sT0, sW))
P("s_lshl_b32 %s, %s, 13" % (sT1, sJ))
P("s_add_u32 %s, %s, %s" % (sT0, sT0, sT1))
P("s_add_u32 %s, %s, %d" % (sT0, sT0, L_X))
P("v_add_u32 v30, %s, v30" % sT0)
P("s_cmp_eq_u32 %s, 0" % sNH)
aRES = 156
M = Prog()
def stats_block(p, c):
    lab[0] += 1
    L = "L_st%d" % lab[0]
    p("s_cmp_eq_u32 %s, 0" % sNH)
    p("s_cbranch_scc1 %s_a" % L)
    for par in (1, 0):
        for s in range(8 * c + 4 * par, 8 * c + 4 * par + 4):
            for k in range(4):
                x = v(XF + 4 * s + k)
                p("v_dot2c_f32_bf16 %s, %s, %s" % (v(24 + 2 * (k & 1)), sONE, x))
                p("v_dot2c_f32_bf16 %s, %s, %s" % (v(25 + 2 * (k & 1)), x, x))
        if par == 1:
            p("s_branch %s_b" % L); p("%s_a:" % L)
    p("%s_b:" % L)
    p("s_nop 2")
for c in range(4):
    M.wait(vm=tX[2 * c + 1], lg=0 if c == 0 else None); M("s_barrier")
    tg = []
    for s in range(8 * c, 8 * c + 8):
        tg.append(M.tagged("ds_read_b128 %s, %s offset:%d" % (v(XF + 4 * s, 4), v(18 + (s & 3)), 8192 * (s >> 2))))
    if c == 3:
        for T in range(4):
            if T: M("v_xor_b32 v31, %d, v30" % (32 * T))
            M("ds_read_b64 %s, %s" % (a(aRES + 2 * T, 2), "v31" if T else "v30"))
        M.wait(lg=tg[-1])
        stats_block(M, c)
        M("v_pk_add_f32 v[24:25], v[24:25], v[26:27]")
        M("ds_write_b64 v28, v[24:25]")
    for n, s in enumerate(range(8 * c, 8 * c + 8)):
        M.wait(lg=tg[n])
        M("v_mfma_f32_32x32x16_bf16 %s, %s, %s, %s" % (v(ACC1, 16), a(4 * s, 4), v(XF + 4 * s, 4), "0" if s == 0 else v(ACC1, 16)))
    if c < 3:
        stats_block(M, c)
P.extend(weave(M.ins, b2, after=is_mfma, per=0.75))
P.wait(lg=0)
P("s_barrier")
P("ds_read_b128 v[16:19], v29")
P("ds_read_b128 v[20:23], v29 offset:16")
P("s_lshr_b32 %s, %s, 1" % (sT0, sJ))
P("s_lshr_b32 %s, %s, 1" % (sT1, sT0))
P("s_add_u32 %s, %s, 1" % (sT1, sT1))
P("s_sub_u32 %s, 0, %s" % (sT2, sT1))
P("s_and_b32 %s, %s, 1" % (sT0, sT0))
P("s_cselect_b32 %s, %s, %s" % (sT1, sT2, sT1))
P("s_add_u32 %s, %s, %s" % (sT2, sB, sT1))
P("s_and_b32 %s, %s, 31" % (sFD, sT2))
P("s_lshl_b32 %s, %s, 3" % (sFD, sFD))
P("s_add_u32 %s, %s, %s" % (sFD, sFD, sJ))
P("s_lshl_b32 %s, %s, 7" % (sFD, sFD))
P("s_lshl_b32 %s, %s, 5" % (sT3, sMH))
P("s_add_u32 %s, %s, %s" % (sT2, sT2, sT3))
P("s_ashr_i32 %s, %s, 6" % (sT3, sT2))
P("s_and_b32 %s, %s, 63" % (sT2, sT2))
P("s_lshl_b32 %s, %s, 15" % (sT2, sT2))
P("s_lshl_b32 %s, %s, 12" % (sT4, sJ))
P("s_add_u32 %s, %s, %s" % (sT2, sT2, sT4))
P("s_lshl_b32 %s, %s, 11" % (sT4, sNH))
P("s_add_u32 %s, %s, %s" % (sT2, sT2, sT4))
P("s_add_u32 %s, %s, %d" % (sT2, sT2, WS_A2))
P("v_and_b32 v26, 31, v0")
P("v_add_u32 v26, %s, v26" % sT3)
P("v_cmp_gt_u32 vcc, 32, v26")
P("v_and_b32 v26, 31, v26")
P("v_and_b32 v28, 32, v0")
P("v_add_u32 v28, v28, v26")
P("v_cndmask_b32 v27, 0, -1, vcc")
P("v_lshl_add_u32 v28, v28, 4, %s" % sT2)
P.wait(lg=0)
P("v_pk_add_f32 v[16:17], v[16:17], v[18:19]")
P("v_pk_add_f32 v[20:21], v[20:21], v[22:23]")
P("v_pk_add_f32 v[16:17], v[16:17], v[20:21]")
P("v_mul_f32 v16, %s, v16" % f2h(-1.0 / 512))
P("v_mul_f32 v17, %s, v17" % f2h(1.0 / 512))
P("v_fma_f32 v17, -v16, v16, v17")
P("v_max_f32 v17, 0, v17")
P("v_add_f32 v18, %s, v17" % f2h(EPS))
P("v_rsq_f32 v20, v18")
P("v_rcp_f32 v19, v18")
P("v_pk_fma_f32 %s, %s, v[16:17], %s op_sel_hi:[1,0,1]" % (v(ACC1, 2), v(CS1, 2), v(ACC1, 2)))
P("v_fmaak_f32 v19, v19, v17, %s" % f2h(EPS))
P("v_mul_f32 v21, v16, v20")
P("v_mul_f32 v18, v18, v19")
P("v_rsq_f32 v19, v18")
P("v_sqrt_f32 v17, v18")
P("v_pk_fma_f32 %s, %s, v[16:17], %s op_sel_hi:[1,0,1]" % (v(ACC1 + 2, 2), v(CS1 + 2, 2), v(ACC1 + 2, 2)))
P("v_mul_f32 v18, v19, v19")
P("v_mul_f32 v23, %s, v19" % f2h(K0))
P("v_mul_f32 v18, v18, v19")
P("v_mul_f32 v22, %s, v18" % f2h(K1))
for k in range(2, 8):
    P("v_pk_fma_f32 %s, %s, v[16:17], %s op_sel_hi:[1,0,1]" % (v(ACC1 + 2 * k, 2), v(CS1 + 2 * k, 2), v(ACC1 + 2 * k, 2)))

def gelu_pairs(p, pairs, cc, iv):
    for z, t, d in pairs: p("v_pk_mul_f32 %s, %s, %s" % (v(t, 2), v(z, 2), v(z, 2)))
    for z, t, d in pairs: p("v_pk_fma_f32 %s, %s, %s, %s op_sel:[0,0,1] op_sel_hi:[1,0,1]" % (v(t, 2), v(t, 2), v(cc, 2), v(cc, 2)))
    for z, t, d in pairs: p("v_pk_mul_f32 %s, %s, %s" % (v(t, 2), v(t, 2), v(z, 2)))
    for z, t, d in pairs: p("v_exp_f32 %s, %s" % (v(t), v(t))); p("v_exp_f32 %s, %s" % (v(t + 1), v(t + 1)))
    for z, t, d in pairs: p("v_pk_fma_f32 %s, %s, %s, %s op_sel:[0,1,1] op_sel_hi:[1,1,1]" % (v(t, 2), v(t, 2), v(iv, 2), v(iv, 2)))
    for z, t, d in pairs: p("v_rcp_f32 %s, %s" % (v(t), v(t))); p("v_rcp_f32 %s, %s" % (v(t + 1), v(t + 1)))
    for z, t, d in pairs: p("v_pk_mul_f32 %s, %s, %s" % (v(t, 2), v(t, 2), v(z, 2)))
    for z, t, d in pairs: p("v_cvt_pk_bf16_f32 %s, %s, %s" % (v(d), v(t), v(t + 1)))

tH = None
for u in range(2):
    prs = []
    for n, g in enumerate((u, u + 2)):
        for k in range(2):
            prs.append((ACC1 + 4 * g + 2 * k, CS1 + 4 * g + 2 * k, 8 + 4 * u + 2 * n + k))
    gelu_pairs(P, prs, 22, 16)
    for k in range(4): P("v_and_b32 %s, v27, %s" % (v(8 + 4 * u + k), v(8 + 4 * u + k)))
    tH = P.tagged("buffer_store_dwordx4 %s, v28, %s, 0 offen offset:%d sc1" % (v(8 + 4 * u, 4), SWS, 1024 * u))
stamp(P)
P("v_cmp_gt_u32 vcc, 32, v0")
P("s_lshl_b32 %s, %s, 8" % (sT0, sW))
P("s_add_u32 %s, %s, %d" % (sT0, sT0, L_FIN))
P("v_lshl_add_u32 v29, v0, 2, %s" % sT0)
P("v_cndmask_b32 v20, v21, v20, vcc")
P("ds_write_b32 v29, v20")
ZA, ZB = 32, 48
vB3 = 16
fill = []
q = Prog()
q("s_mul_i32 %s, %s, 224" % (sT1, sM))
q("s_mov_b32 %s, 0x%x" % (sT2, 4682))
fill.append(q.ins)
for i in range(7):
    q = Prog()
    q("v_add_u32 v24, %d, v0" % (64 * i))
    q("v_mul_u32_u24 v25, %s, v24" % sT2)
    q("v_lshrrev_b32 v25, 16, v25")
    q("v_mul_u32_u24 v25, %d, v25" % (3584 - 224))
    q("v_lshl_add_u32 v25, v24, 4, v25")
    q("v_add_u32 %s, %s, v25" % (v(vB3 + i), sT1))
    if i & 3: q("v_subrev_u32 %s, %d, %s" % (v(vB3 + i), 1024 * (i & 3), v(vB3 + i)))
    fill.append(q.ins)
def b3_round(gexpr):
    gs = []
    for i in range(7):
        q = Prog()
        if i == 0:
            for e in gexpr: q(e)
            q("s_mul_i32 %s, %s, 114688" % (sOFF, sT3))
            q("s_mul_i32 %s, %s, 7168" % (sT3, sT3))
            q("s_add_u32 m0, %s, %d" % (sT3, L_B3))
        if i == 4: q("s_add_u32 m0, m0, 4096")
        t = q.tagged("buffer_load_dwordx4 %s, %s, %s offen offset:%d lds" % (v(vB3 + i), SW3, sOFF, 1024 * (i & 3)))
        gs.append(q.ins)
    return gs, t
for r in range(2):
    g, t = b3_round(["s_add_u32 %s, %s, %d" % (sT3, sW, 3 + 4 * r)]); fill += g
M = Prog()
for s in range(32):
    acc = ZA if (s & 1) == 0 else ZB
    ss = (s >> 1) + 16 * (s & 1)
    M("v_mfma_f32_32x32x16_bf16 %s, %s, %s, %s" % (v(acc, 16), v(XF + 4 * ss, 4), v(BD + 4 * (s >> 1), 4), "0" if s < 2 else v(acc, 16)))
P.extend(weave(M.ins, fill, after=is_mfma, per=0.75))
P("v_or_b32 v24, %s, v0" % sW)
P("v_mov_b32 v25, 0x%x" % OOB)
P("v_cmp_eq_u32 vcc, 0, v24")
P("v_mov_b32 v24, %d" % WS_FLAG)
P.wait(vm=tE)
P("v_add_u32 %s, 0x9e3779b9, %s" % (v(vTAG), v(vTAG)))
P("v_cndmask_b32 v1, v25, v24, vcc")
P.wait(vm=tH)
P("s_barrier")
flag_store(P, 0, sFD, 1)
stamp(P)
P("v_bfe_u32 v24, v0, 5, 1")
P("v_lshl_add_u32 v25, v24, 4, %s" % sT0)
for g in range(4):
    P("ds_read_b128 %s, v25 offset:%d" % (v(96 + 4 * g, 4), 32 * g))
P("v_and_b32 v26, 15, v0")
P("s_lshl_b32 %s, %s, 6" % (sT1, sNH))
P("s_add_u32 %s, %s, %s" % (sT1, sT1, sT0))
P("v_lshl_add_u32 v26, v26, 2, %s" % sT1)
tFin = P.tagged("ds_read2_b32 v[30:31], v26 offset0:0 offset1:32")
P("v_lshlrev_b32 v26, 31, v0")
P("v_or_b32 v26, 1.0, v26")
P("v_and_b32 v27, 1, v0")
P("v_lshlrev_b32 v27, 10, v27")
P("v_lshl_add_u32 v27, v24, 8, v27")
P("v_bfe_u32 v28, v0, 1, 4")
P("v_lshl_add_u32 v27, v28, 4, v27")
P("s_lshl_b32 %s, %s, 12" % (sT1, sNH))
P("s_lshl_b32 %s, %s, 11" % (sT2, sMH))
P("s_add_u32 %s, %s, %s" % (sT1, sT1, sT2))
P("s_add_u32 %s, %s, %d" % (sT1, sT1, L_Z))
P("v_add_u32 v27, %s, v27" % sT1)
for k in range(8):
    P("v_pk_fma_f32 %s, %s, v[26:27], %s op_sel_hi:[1,0,1]" % (v(ZA + 2 * k, 2), v(ZB + 2 * k, 2), v(ZA + 2 * k, 2)))
P.wait(lg=tFin)
for k in range(8):
    P("v_pk_mul_f32 %s, %s, %s" % (v(ZA + 2 * k, 2), v(ZA + 2 * k, 2), v(96 + 2 * k, 2)))
for k in range(8):
    P("v_cvt_pk_bf16_f32 %s, %s, %s" % (v(ZB + k), v(ZA + 2 * k), v(ZA + 2 * k + 1)))
P("ds_write_b128 v27, %s" % v(ZB, 4))
P("ds_write_b128 v27, %s offset:512" % v(ZB + 4, 4))
P("v_bfe_u32 v24, v0, 2, 4")
P("v_and_b32 v25, 2, v24")
P("v_bfe_u32 v28, v0, 4, 1")
P("v_or_b32 v25, v25, v28")
P("v_lshlrev_b32 v25, 5, v25")
P("v_and_b32 v28, 3, v0")
P("v_lshl_add_u32 v25, v28, 3, v25")
P("v_lshl_add_u32 v112, v24, 7, v25")
for T in range(1, 4): P("v_xor_b32 %s, %d, v112" % (v(112 + T), 32 * T))
P("v_lshlrev_b32 v29, 4, v0")
P("v_add_u32 v28, %d, v29" % L_Z)
P.wait(lg=0)
P("s_barrier")
def B2F(ks, T):
    n = 4 * ks + T
    return ("a", 4 * n) if n < 32 else ("v", 128 + 4 * (n - 32))
b2r = []; tB2r = {}
for ks in range(16):
    for T in range(4):
        r = B2F(ks, T)
        q = Prog()
        q("ds_read_b64_tr_b16 %s, %s offset:%d" % (R(r, 2), v(112 + T), 4096 * ks))
        tB2r[ks, T] = q.tagged("ds_read_b64_tr_b16 %s, %s offset:%d" % (R((r[0], r[1] + 2), 2), v(112 + T), 4096 * ks + 2048))
        b2r.append(q.ins)
ZF, UA = 64, 96
tz = []
for f in range(8):
    tz.append(P.tagged("ds_read_b128 %s, v28 offset:%d" % (v(ZF + 4 * f, 4), 1024 * f)))
P("v_lshrrev_b32 v24, 4, v0")
P("v_and_b32 v25, 15, v0")
P("v_lshlrev_b32 v24, 17, v24")
P("v_lshl_add_u32 v27, v25, 3, v24")
P("s_lshl_b32 %s, %s, 19" % (sT1, sW))
P("s_lshl_b32 %s, %s, 7" % (sT2, sCU))
P("s_add_u32 %s, %s, %s" % (sT1, sT1, sT2))
P("s_add_u32 %s, %s, %d" % (sT1, sT1, WS_U))
P("v_add_u32 v27, %s, v27" % sT1)
P.wait(lg=tz[-1])
M = Prog()
for step in range(4):
    ab, mh2 = step >> 1, step & 1
    for par in range(2):
        for im in range(2):
            Fr = (aFC if ab == im else (aFP if ab == 1 else aFN)) + 4 * mh2
            acc = UA + 8 * par + 4 * im
            M("v_mfma_f32_16x16x32_bf16 %s, %s, %s, %s" % (v(acc, 4), a(Fr, 4), v(ZF + 4 * (4 * ab + 2 * mh2 + par), 4), "0" if step == 0 else v(acc, 4)))
P.extend(weave(M.ins, b2r[:16], after=is_mfma))
ACC2 = 32
for T in range(4):
    for k in range(2):
        P("v_accvgpr_read_b32 v24, %s" % a(aRES + 2 * T + k))
        P("v_and_b32 %s, 0xffff0000, v24" % v(ACC2 + 4 * T + 2 * k + 1))
        P("v_lshlrev_b32 %s, 16, v24" % v(ACC2 + 4 * T + 2 * k))
        P.extend(b2r[16 + 2 * T + k])
for r in range(4):
    P("v_cvt_pk_bf16_f32 %s, %s, %s" % (v(48 + 2 * r), v(UA + r), v(UA + 4 + r)))
    P("v_cvt_pk_bf16_f32 %s, %s, %s" % (v(49 + 2 * r), v(UA + 8 + r), v(UA + 12 + r)))
    if r == 3: P("v_add_u32 v27, 0x18000, v27")
    P("buffer_store_dwordx2 %s, v27, %s, %s offen sc1" % (v(48 + 2 * r, 2), SWS, C(8 * r) if r < 3 else "0"))
for k in range(8):
    P("v_pk_fma_f32 %s, %s, v[30:31], v[30:31] op_sel:[0,0,1] op_sel_hi:[1,0,1]" % (v(ACC2 + 2 * k, 2), v(ACC2 + 2 * k, 2)))
P("v_lshrrev_b32 v24, 4, v0")
P("v_and_b32 v25, 15, v0")
P("v_lshlrev_b32 v24, 9, v24")
P("v_lshl_add_u32 v23, v25, 4, v24")
P("s_lshl_b32 %s, %s, 5" % (sT1, sMH))
P("s_add_u32 %s, %s, %s" % (sT1, sT1, sB))
P("s_lshl_b32 %s, %s, 15" % (sT4, sT1))
P("s_lshl_b32 %s, %s, 8" % (sT2, sNH))
P("s_add_u32 %s, %s, %s" % (sT4, sT4, sT2))
P("s_add_u32 %s, %s, %d" % (sT2, sT4, WS_A2))
P("v_add_u32 v26, %s, v23" % sT2)
P("v_lshrrev_b32 v24, 3, v0")
P("s_lshl_b32 %s, %s, 10" % (sT2, sB))
P("s_add_u32 %s, %s, %d" % (sT2, sT2, WS_FLAG))
P("v_lshl_add_u32 v25, v24, 7, %s" % sT2)
for g in b2r[24:40]: P.extend(g)
stamp(P)
spin(P, 25)
stamp(P)
aA2 = 164
tA2 = []; ld = []
for ks in range(16):
    q = Prog()
    tA2.append(q.tagged("buffer_load_dwordx4 %s, v26, %s, %s offen offset:%d sc1" % (a(aA2 + 4 * ks, 4), SWS, C(ks >> 1), 2048 * (ks & 1))))
    ld.append(q.ins)
main = sum(ld, [])
P.extend(weave(main, b2r[40:], after=is_vmem, per=1.5))
P.wait(lg=0)
P("s_barrier")
late = []
g, t = b3_round(["s_cmp_eq_u32 %s, 3" % sW, "s_cselect_b32 %s, 11, %s" % (sT3, sW)]); late += g
g, tB3 = b3_round(["s_add_u32 %s, %s, 12" % (sT3, sW)]); late += g
M = Prog()
for ks in range(16):
    M.wait(vm=tA2[ks])
    for T in range(4):
        M("v_mfma_f32_16x16x32_bf16 %s, %s, %s, %s" % (v(ACC2 + 4 * T, 4), R(B2F(ks, T), 4), a(aA2 + 4 * ks, 4), v(ACC2 + 4 * T, 4)))
P.extend(weave(M.ins, late, after=is_mfma, per=0.25))
P("s_lshl_b32 %s, %s, 12" % (sT2, sJ))
P("s_add_u32 %s, %s, %s" % (sT2, sT2, sT4))
P("s_add_u32 %s, %s, %d" % (sT2, sT2, WS_A3))
P("v_add_u32 v26, %s, v23" % sT2)
P("s_lshl_b32 %s, %s, 11" % (sT2, sT1))
P("s_lshl_b32 %s, %s, 8" % (sT3, sJ))
P("s_add_u32 %s, %s, %s" % (sT2, sT2, sT3))
P("s_lshl_b32 %s, %s, 6" % (sT3, sNH))
P("s_add_u32 %s, %s, %s" % (sT2, sT2, sT3))
P("s_add_u32 %s, %s, %d" % (sT2, sT2, WS_S2))
P("v_lshl_add_u32 v27, v0, 2, %s" % sT2)
P("v_lshlrev_b32 v24, 26, v0")
P("v_and_b32 v24, 0x40000000, v24")
P("v_or_b32 v27, v27, v24")
P("v_mov_b32 v28, 0"); P("v_mov_b32 v29, 0"); P("v_mov_b32 v30, 0"); P("v_mov_b32 v31, 0")
for u in range(2):
    for k in range(4):
        P("v_cvt_pk_bf16_f32 %s, %s, %s" % (v(vX1 + 4 * u + k), v(ACC2 + 8 * u + 2 * k), v(ACC2 + 8 * u + 2 * k + 1)))
    P("buffer_store_dwordx4 %s, v26, %s, 0 offen offset:%d sc1" % (v(vX1 + 4 * u, 4), SWS, 2048 * u))
for k in range(8):
    P("v_dot2c_f32_bf16 %s, %s, %s" % (v(28 + 2 * (k & 1)), sONE, v(vX1 + k)))
    P("v_dot2c_f32_bf16 %s, %s, %s" % (v(29 + 2 * (k & 1)), v(vX1 + k), v(vX1 + k)))
P("v_pk_add_f32 v[28:29], v[28:29], v[30:31]")
P("v_permlane32_swap_b32 v28, v29")
P("v_add_f32 v28, v28, v29")
P("v_mov_b32 v29, v28")
P("v_permlane16_swap_b32 v28, v29")
P("v_add_f32 v28, v28, v29")
tS2 = P.tagged("buffer_store_dword v28, v27, %s, 0 offen sc1" % SWS)
stamp(P)
P("s_mul_i32 %s, %s, 12288" % (sFSL, sW))
P("s_mul_i32 %s, %s, 28672" % (sR3, sW))
P("s_add_u32 %s, %s, %d" % (sR3, sR3, L_B3))
P("s_mul_i32 %s, %s, %d" % (sK4, sW, 448 * 1024))
def b4_dma(k0, k1, sbase, off):
    gs = []; tags = {}
    n = 0
    for pi in range(2 * k0, 2 * k1):
        q = Prog()
        i = n & 3
        if i == 0:
            q("s_add_u32 %s, %s, %d" % (sOFF, sK4, pi * 8192))
            q("s_add_u32 m0, %s, %d" % (sbase, off + 1024 * n))
        t = q.tagged("buffer_load_dwordx4 %s, %s, %s offen offset:%d lds" % (v(vW + i), SW4, sOFF, 1024 * i))
        tags[pi >> 1] = t
        gs.append(q.ins); n += 1
    return gs, tags
def B4F(k, nh):
    return (128 + 8 * k + 4 * nh) if k < 12 else (8 * (k - 12) + 4 * nh)
vT4 = 120
def b4_read(k, base, off):
    gs = []
    for nh in range(2):
        q = Prog()
        q("ds_read_b64_tr_b16 %s, %s offset:%d" % (a(B4F(k, nh), 2), v(base + 2 * nh), off))
        q("ds_read_b64_tr_b16 %s, %s offset:%d" % (a(B4F(k, nh) + 2, 2), v(base + 2 * nh + 1), off))
        gs.append(q.ins)
    return gs
g, tR1 = b4_dma(0, 5, sFSL, 0)
Sx = Prog()
tr32_bases(Sx, vT4, 24, None)
Sx("v_xor_b32 %s, 64, %s" % (v(vT4 + 2), v(vT4)))
Sx("v_xor_b32 %s, 64, %s" % (v(vT4 + 3), v(vT4 + 1)))
for i in range(4):
    Sx("v_add_u32 %s, %s, %s" % (v(vT4 + 4 + i), sR3, v(vT4 + i)))
    Sx("v_add_u32 %s, %s, %s" % (v(vT4 + i), sFSL, v(vT4 + i)))
Sx("v_bfe_u32 v24, v0, 2, 4")
Sx("v_mul_u32_u24 v24, 224, v24")
Sx("v_and_b32 v25, 3, v0")
Sx("v_lshl_add_u32 v24, v25, 3, v24")
Sx("v_add_u32 v116, %d, v24" % L_B3)
Sx("v_add_u32 v117, %d, v24" % (L_B3 + 8 * 7168))
Sx("v_add_u32 v118, %s, v24" % sR3)
for i in range(4): Sx("v_mov_b32 %s, %s" % (v(28 + i), sONE))
Sx("s_lshl_b32 %s, %s, 7" % (sFD, sCU))
Sx("s_add_u32 %s, %s, 32768" % (sFD, sFD))
P.extend(weave(sum(g, []), [Sx.ins[i:i + 4] for i in range(0, len(Sx.ins), 4)], after=is_vmem))
P.wait(vm=tS2)
P("s_barrier")
flag_store(P, 1, sFD, 1)
stamp(P)
ACC3, CS3, BB = 32, 88, 128
M = Prog()
for kk in range(4):
    tg = []
    for T in range(7):
        r = BB + 28 * kk + 4 * T
        M("ds_read_b64_tr_b16 %s, v118 offset:%d" % (v(r, 2), kk * 7168 + T * 32))
        tg.append(M.tagged("ds_read_b64_tr_b16 %s, v118 offset:%d" % (v(r + 2, 2), kk * 7168 + 3584 + T * 32)))
    for T in range(7):
        M.wait(lg=tg[T])
        M("v_mfma_f32_16x16x32_bf16 %s, %s, v[28:31], %s" % (v(CS3 + 4 * T, 4), v(BB + 28 * kk + 4 * T, 4), "0" if kk == 0 else v(CS3 + 4 * T, 4)))
P.extend(M)
P("v_and_b32 v25, 48, v0")
P("v_add_u32 v24, %s, v25" % sFSL)
P("s_mov_b32 exec_lo, 0x00010001")
P("s_mov_b32 exec_hi, 0x00010001")
for T in range(7):
    P("ds_write_b128 v24, %s offset:%d" % (v(CS3 + 4 * T, 4), 10240 + 64 * T))
P("s_mov_b64 exec, -1")
P("s_lshl_b32 %s, %s, 1" % (sT1, sPG))
P("s_add_u32 %s, %s, %s" % (sT1, sT1, sMH))
P("s_lshl_b32 %s, %s, 5" % (sT2, sNH))
P("s_add_u32 %s, %s, %s" % (sHB3, sT1, sT2))
P("s_lshl_b32 %s, %s, 15" % (sT2, sHB3))
P("s_add_u32 %s, %s, %d" % (sT2, sT2, WS_A3))
P("v_add_u32 v26, %s, v23" % sT2)
P("s_lshl_b32 %s, %s, 11" % (sT2, sHB3))
P("s_add_u32 %s, %s, %d" % (sT2, sT2, WS_S2))
P("v_lshl_add_u32 v27, v0, 2, %s" % sT2)
P("v_lshrrev_b32 v24, 3, v0")
P("s_lshl_b32 %s, %s, 10" % (sT2, sT1))
P("s_add_u32 %s, %s, %d" % (sT2, sT2, WS_FLAG + 32768))
P("v_lshl_add_u32 v119, v24, 7, %s" % sT2)
P.wait(lg=0)
P("s_barrier")
for w2 in range(4):
    for T in range(7):
        P("ds_read_b128 %s, v25 offset:%d" % (v(BB + 28 * w2 + 4 * T, 4), 12288 * w2 + 10240 + 64 * T))
P.wait(lg=0)
for k in range(14):
    P("v_pk_add_f32 %s, %s, %s" % (v(BB + 2 * k, 2), v(BB + 2 * k, 2), v(BB + 28 + 2 * k, 2)))
    P("v_pk_add_f32 %s, %s, %s" % (v(BB + 56 + 2 * k, 2), v(BB + 56 + 2 * k, 2), v(BB + 84 + 2 * k, 2)))
for k in range(14):
    P("v_pk_add_f32 %s, %s, %s" % (v(CS3 + 2 * k, 2), v(BB + 2 * k, 2), v(BB + 56 + 2 * k, 2)))
P.wait(vm=tR1[4])
for k in range(5):
    for g in b4_read(k, vT4, 2048 * k): P.extend(g)
P("s_barrier")
stamp(P)
spin(P, 119)
stamp(P)
tA3 = {}; ld = []
for ks in range(16):
    for th in range(2):
        q = Prog()
        tA3[ks, th] = q.tagged("buffer_load_dwordx4 %s, v26, %s, %s offen offset:%d sc1" % (a(8 * ks + 4 * th, 4), SWS, C(ks >> 1), 2048 * (ks & 1) + 256 * th))
        ld.append(q.ins)
ST = 184
for jj in range(8):
    q = Prog()
    tSt = q.tagged("buffer_load_dword %s, v27, %s, 0 offen offset:%d sc1" % (v(ST + jj), SWS, 256 * jj))
    ld.append(q.ins)
g, tR2 = b4_dma(5, 11, sFSL, 0)
ld += g
def b3_reads(ks):
    gs = []; tg = []
    for T in range(7):
        r = BB + 28 * (ks & 1) + 4 * T
        base = 116 + (ks >> 3)
        q = Prog()
        q("ds_read_b64_tr_b16 %s, %s offset:%d" % (v(r, 2), v(base), (ks & 7) * 7168 + T * 32))
        gs.append(q.ins)
        q = Prog()
        tg.append(q.tagged("ds_read_b64_tr_b16 %s, %s offset:%d" % (v(r + 2, 2), v(base), (ks & 7) * 7168 + 3584 + T * 32)))
        gs.append(q.ins)
    return gs, tg
PRE = 12
gs, tg = b3_reads(0)
P.extend(weave(sum(ld[:PRE], []), gs, after=is_vmem, per=2))
M = []
for ks in range(16):
    q = Prog()
    for T in range(7):
        for th in range(2):
            q.wait(vm=tA3[ks, th] if T == 0 else None, lg=tg[T] if th == 0 else None)
            acc = ACC3 + 28 * th + 4 * T
            q("v_mfma_f32_16x16x32_bf16 %s, %s, %s, %s" % (v(acc, 4), v(BB + 28 * (ks & 1) + 4 * T, 4), a(8 * ks + 4 * th, 4), "0" if ks == 0 else v(acc, 4)))
    if ks < 15:
        gs, tg = b3_reads(ks + 1)
        M += weave(q.ins, gs, after=is_mfma)
    else:
        M += q.ins
P.extend(weave(M, ld[PRE:], after=is_mfma, per=0.25))
P("s_barrier")
stamp(P)
P.wait(vm=tSt)
for k in range(2):
    P("v_pk_add_f32 %s, %s, %s" % (v(ST + 2 * k, 2), v(ST + 2 * k, 2), v(ST + 4 + 2 * k, 2)))
P("v_pk_add_f32 %s, %s, %s" % (v(ST, 2), v(ST, 2), v(ST + 2, 2)))
P("v_add_f32 v16, %s, %s" % (v(ST), v(ST + 1)))
P("v_mov_b32 v17, v16")
P("v_permlane32_swap_b32 v16, v17")
P("v_mul_f32 v16, %s, v16" % f2h(-1.0 / 512))
P("v_mul_f32 v17, %s, v17" % f2h(1.0 / 512))
P("v_fma_f32 v17, -v16, v16, v17")
P("v_max_f32 v17, 0, v17")
P("v_add_f32 v17, %s, v17" % f2h(EPS))
P("v_rsq_f32 v19, v17")
P("v_sqrt_f32 v17, v17")
P("v_mov_b32 v20, v16")
P("v_mul_f32 v18, v19, v19")
P("v_mul_f32 v18, v18, v19")
P("v_mul_f32 v19, %s, v19" % f2h(K0))
P("v_mul_f32 v18, %s, v18" % f2h(K1))
P("v_mov_b32 v21, v17")
P("v_mov_b32 v25, v19")
P("v_mov_b32 v24, v18")
P("v_permlane16_swap_b32 v16, v20")
P("v_permlane16_swap_b32 v17, v21")
P("v_permlane16_swap_b32 v19, v25")
P("v_permlane16_swap_b32 v18, v24")
P("s_mul_i32 %s, %s, 114688" % (sT2, sHB3))
P("s_mul_i32 %s, %s, 7168" % (sT3, sM))
P("s_add_u32 %s, %s, %s" % (sT2, sT2, sT3))
P("s_add_u32 %s, %s, %d" % (sT2, sT2, WS_H))
P("v_lshl_add_u32 v26, v0, 4, %s" % sT2)
P("s_lshl_b32 %s, %s, 13" % (sT2, sW))
P("s_add_u32 %s, %s, %d" % (sT2, sT2, WS_FLAG + 32768))
P("v_lshl_add_u32 v27, v0, 7, %s" % sT2)
P.wait(vm=tR2[10])
for k in range(5, 11):
    for g in b4_read(k, vT4, 2048 * (k - 5)): P.extend(g)
g3b, tR3b = b4_dma(17, 28, sR3, 0)
g3a, tR3a = b4_dma(11, 17, sFSL, 0)
E = Prog()
for T in range(7):
    tmp = 128 + 8 * (T & 1); out = 144 + 4 * (T & 1)
    for th in range(2):
        for k in range(2):
            z = ACC3 + 28 * th + 4 * T + 2 * k
            E("v_pk_fma_f32 %s, %s, %s, %s op_sel_hi:[1,0,1]" % (v(z, 2), v(CS3 + 4 * T + 2 * k, 2), v(16 + 4 * th, 2), v(z, 2)))
    q = [Prog(), Prog()]
    for th in range(2):
        gelu_pairs(q[th], [(ACC3 + 28 * th + 4 * T + 2 * k, tmp + 4 * th + 2 * k, out + 2 * th + k) for k in range(2)], 18 if th == 0 else 24, 16 + 4 * th)
    n = len(q[0].ins)
    for i in range(0, n, 2):
        E.extend(q[0].ins[i:i + 2]); E.extend(q[1].ins[i:i + 2])
    E("v_permlane16_swap_b32 %s, %s" % (v(out), v(out + 2)))
    E("v_permlane16_swap_b32 %s, %s" % (v(out + 1), v(out + 3)))
    tHs = E.tagged("buffer_store_dwordx4 %s, v26, %s, %s offen offset:%d sc1" % (v(out, 4), SWS, C(T >> 2), 1024 * (T & 3)))
is_exp = lambda i: i.t is not None and i.t.startswith("v_exp")
P.extend(weave(E.ins, g3b, after=is_exp, per=0.5))
tPo = P.tagged("buffer_load_dword %s, v27, %s, 0 offen sc1" % (v(vPOLL), SWS))
stamp(P)
P.wait(lg=0)
aG, aU = 224, 240
Gp = Prog()
Gp("s_lshl_b32 %s, %s, 5" % (sT1, sMH))
Gp("s_add_u32 %s, %s, %s" % (sT1, sT1, sB))
Gp("s_cmp_eq_u32 %s, 0" % sT1)
Gp("s_cselect_b32 %s, 32, 31" % sT2)
Gp("s_sub_u32 %s, 64, %s" % (sT3, sT1))
Gp("s_and_b32 %s, %s, 63" % (sT3, sT3))
Gp("s_cmp_lt_u32 %s, 4" % sJ)
Gp("s_cselect_b32 %s, %s, %s" % (sT3, sT1, sT3))
Gp("s_cselect_b64 vcc, -1, 0")
Gp("v_and_b32 v16, 31, v0")
Gp("v_sub_u32 v17, %s, v16" % sT2)
Gp("v_cndmask_b32 v17, v17, v16, vcc")
Gp("v_cvt_f32_u32 v17, v17")
Gp("v_bfe_u32 v18, v0, 5, 1")
Gp("v_mul_f32 v17, %s, v17" % f2h(1.0 / 32))
Gp("v_cvt_f32_u32 v19, v18")
Gp("v_mul_f32 v19, 4.0, v19")
Gp("v_mul_f32 v19, v19, v17")
Gp("s_lshl_b32 %s, %s, 6" % (sT4, sJ))
Gp("s_lshl_b32 %s, %s, 5" % (sT5, sNH))
Gp("s_add_u32 %s, %s, %s" % (sT4, sT4, sT5))
Gp("v_add_u32 v16, %s, v16" % sT4)
Gp("v_sub_u32 v20, 0, v16")
Gp("v_and_b32 v20, 0xff, v20")
Gp("v_cndmask_b32 v20, v20, v16, vcc")
Gp("v_lshlrev_b32 v20, 2, v20")
Gp("v_lshl_add_u32 v20, v18, 12, v20")
Gp("s_lshl_b32 %s, %s, 15" % (sT3, sT3))
Gp("s_add_u32 %s, %s, %d" % (sT3, sT3, WS_U))
Gp("v_add_u32 v20, %s, v20" % sT3)
Gp("v_mov_b32 v21, 0x%x" % OOB)
Gp("v_cmp_eq_u32 vcc, 0, v16")
Gp("v_cndmask_b32 v28, v20, v21, vcc")
gg = [Gp.ins]
for ks in range(4):
    for i in range(4):
        q = Prog()
        q("v_fmamk_f32 v20, v17, %s, v19" % f2h(8 * ks + i))
        q("v_cos_f32 v21, v20"); q("v_sin_f32 v22, v20")
        q("s_nop 0")
        q("v_cvt_pk_bf16_f32 v21, v21, v22")
        q("v_accvgpr_write_b32 %s, v21" % a(aG + 4 * ks + i))
        gg.append(q.ins)
P.extend(weave(sum(g3a, []), gg, after=is_vmem, per=1.5))
P("s_add_u32 %s, %s, 32768" % (sFD, sFD))
spin(P, 27, first=tPo)
P("s_barrier")
flag_store(P, 2, sFD, 1)
P("s_cmp_eq_u32 s2, 0")
P("s_cselect_b32 %s, %d, 0" % (sT4, WS_FLAG))
P("s_cselect_b32 %s, 0, 0x%x" % (sT5, 0x10000000))
P("v_subrev_u32 v16, %s, v1" % sT4)
P("v_or_b32 v16, %s, v16" % sT5)
P("buffer_store_dword %s, v16, %s, 0 offen sc1" % (v(vTAG), SWS))
stamp(P)
tU = None
for ks in range(4):
    for i in range(4):
        tU = P.tagged("buffer_load_dword %s, v28, %s, %s offen offset:%d sc1" % (a(aU + 4 * ks + i), SWS, C(2 * ks), 1024 * i))
XFIN = 112
P("v_lshrrev_b32 v16, 3, v0")
P("v_and_b32 v17, 7, v0")
P("v_lshlrev_b32 v18, 16, v16")
P("v_lshl_add_u32 v18, v17, 4, v18")
P("s_lshl_b32 %s, %s, 19" % (sT2, sW))
P("s_lshl_b32 %s, %s, 7" % (sT3, sCU))
P("s_add_u32 %s, %s, %s" % (sT2, sT2, sT3))
P("v_add_u32 v29, %s, v18" % sT2)
for mh in range(2):
    tXf = P.tagged("buffer_load_dwordx4 %s, v29, %s, %s offen" % (v(XFIN + 4 * mh, 4), SX, C(8 * mh)))
for k in range(17, 28):
    for g in b4_read(k, vT4 + 4, 2048 * (k - 17)): P.extend(g)
P.wait(vm=tR3a[16])
for k in range(11, 17):
    for g in b4_read(k, vT4, 2048 * (k - 11)): P.extend(g)
P("s_mul_i32 %s, %s, 114688" % (sT2, sB))
P("s_mul_i32 %s, %s, 28672" % (sT3, sW))
P("s_add_u32 %s, %s, %s" % (sT2, sT2, sT3))
P("s_add_u32 %s, %s, %d" % (sT2, sT2, WS_H))
P("v_lshl_add_u32 v26, v0, 4, %s" % sT2)
P("v_add_u32 v27, %d, v26" % (32 * 114688))
P("s_lshl_b32 %s, %s, 11" % (sT2, sPG))
P("s_lshl_b32 %s, %s, 9" % (sT3, sW))
P("s_add_u32 %s, %s, %s" % (sT2, sT2, sT3))
P("s_add_u32 %s, %s, %d" % (sT2, sT2, WS_FLAG + 65536))
P("v_lshrrev_b32 v24, 4, v0")
P("v_lshl_add_u32 v25, v24, 7, %s" % sT2)
P("v_and_b32 v18, 31, v0")
P("v_bfe_u32 v19, v0, 5, 1")
P("v_xor_b32 v20, v19, v17")
P("v_lshlrev_b32 v20, 4, v20")
P("v_lshl_add_u32 v20, v18, 8, v20")
P("v_add_u32 v30, %s, v20" % sR3)
P("v_lshlrev_b32 v20, 1, v17")
P("v_xor_b32 v20, v20, v16")
P("v_lshlrev_b32 v20, 4, v20")
P("v_lshl_add_u32 v20, v16, 8, v20")
P("s_lshl_b32 %s, %s, 11" % (sT2, sW))
P("s_add_u32 %s, %s, %d" % (sT2, sT2, L_B3))
P("v_add_u32 v31, %s, v20" % sT2)
P("v_lshlrev_b32 v22, 6, v18")
P("v_lshl_add_u32 v22, v19, 3, v22")
P("v_add_u32 v22, %s, v22" % sR3)
P("v_bfe_u32 v21, v0, 2, 1")
P("v_mul_u32_u24 v21, 28672, v21")
P("v_lshl_add_u32 v21, v16, 6, v21")
P("v_and_b32 v19, 3, v0")
P("v_lshl_add_u32 v21, v19, 4, v21")
P("s_lshl_b32 %s, %s, 9" % (sT2, sW))
P("s_add_u32 %s, %s, %d" % (sT2, sT2, L_B3 + 16384))
P("v_add_u32 v21, %s, v21" % sT2)
P("v_and_b32 v19, 15, v0")
P("v_lshlrev_b32 v19, 7, v19")
P("v_lshl_add_u32 v19, v24, 3, v19")
P("v_add_u32 v24, %s, v19" % sR3)
P("s_mul_i32 %s, %s, 28672" % (sT2, sMH))
P("s_lshl_b32 %s, %s, 10" % (sT3, sNH))
P("s_add_u32 %s, %s, %s" % (sT2, sT2, sT3))
P("s_add_u32 %s, %s, %d" % (sT2, sT2, L_B3 + 18432))
P("v_lshl_add_u32 v20, v0, 4, %s" % sT2)
stamp(P)
spin(P, 25)
stamp(P)
ACC4, YA, RD, RING, NR = 32, 96, 128, 160, 24
tA4 = []; ld = []
for n in range(56):
    mh, i = divmod(n, 28)
    q = Prog()
    tA4.append(q.tagged("buffer_load_dwordx4 %s, %s, %s, %s offen offset:%d sc1" % (v(RING + 4 * (n % NR), 4), v(26 + mh), SWS, C(i >> 2), 1024 * (i & 3))))
    ld.append(q.ins)
Y = Prog()
Y.wait(lg=0)
for ks in range(4):
    Y("v_mfma_f32_32x32x16_bf16 %s, %s, %s, %s" % (v(YA, 16), a(aU + 4 * ks, 4), a(aG + 4 * ks, 4), "0" if ks == 0 else v(YA, 16)))
for T in range(4):
    Y("ds_write_b64 v24, %s offset:%d" % (v(vX1 + 2 * T, 2), 18432 + 32 * T))
for g in range(4):
    Y("v_cvt_pk_bf16_f32 %s, %s, %s" % (v(YA + 4 * g), v(YA + 4 * g), v(YA + 4 * g + 1)))
    Y("v_cvt_pk_bf16_f32 %s, %s, %s" % (v(YA + 4 * g + 1), v(YA + 4 * g + 2), v(YA + 4 * g + 3)))
    Y("ds_write_b64 v22, %s offset:%d" % (v(YA + 4 * g, 2), 16384 + 16 * g))
PRE4 = 16
P.extend(weave(sum(ld[:PRE4], []), [Y.ins[i:i + 3] for i in range(0, len(Y.ins), 3)], after=is_vmem, start=4))
def mf(n):
    mh, i = divmod(n, 28)
    q = Prog()
    q.wait(vm=tA4[n])
    for nh in range(2):
        acc = ACC4 + 32 * mh + 16 * nh
        q("v_mfma_f32_32x32x16_bf16 %s, %s, %s, %s" % (v(acc, 16), a(B4F(i, nh), 4), v(RING + 4 * (n % NR), 4), "0" if i == 0 else v(acc, 16)))
    if n + PRE4 < 56: q.extend(ld[n + PRE4])
    return q.ins
def red_write(mh):
    gs = []
    for nh in range(2):
        for g in range(4):
            q = Prog()
            if g: q("v_xor_b32 v16, %d, v30" % (32 * g))
            q("ds_write_b128 %s, %s offset:%d" % ("v16" if g else "v30", v(ACC4 + 32 * mh + 16 * nh + 4 * g, 4), 8192 * mh + 128 * nh))
            gs.append(q.ins)
    return gs
def fin(mh, pk):
    gs = []
    q = Prog(); q.wait(lg=0); q("s_barrier"); q("v_xor_b32 v16, 16, v31"); q("v_add_u32 v17, %d, v31" % 57344); q("v_add_u32 v18, %d, v16" % 57344); gs.append(q.ins)
    q = Prog()
    tY = q.tagged("ds_read_b128 %s, v21 offset:%d" % (v(YA, 4), 57344 * mh))
    tX1 = q.tagged("ds_read_b128 %s, v20 offset:%d" % (v(YA + 4, 4), 57344 * mh)); gs.append(q.ins)
    tp = []
    for w2 in range(4):
        q = Prog()
        b0, b1 = ("v31", "v16") if w2 < 2 else ("v17", "v18")
        q("ds_read_b128 %s, %s offset:%d" % (v(RD + 8 * w2, 4), b0, 28672 * (w2 & 1) + 8192 * mh))
        tp.append(q.tagged("ds_read_b128 %s, %s offset:%d" % (v(RD + 8 * w2 + 4, 4), b1, 28672 * (w2 & 1) + 8192 * mh)))
        gs.append(q.ins)
    Q = Prog()
    A = ACC4 + 32 * mh
    Q.wait(lg=tX1)
    for k in range(4):
        Q("v_lshlrev_b32 %s, 16, %s" % (v(A + 2 * k), v(YA + 4 + k)))
        Q("v_and_b32 %s, 0xffff0000, %s" % (v(A + 2 * k + 1), v(YA + 4 + k)))
    for w2 in range(4):
        Q.wait(lg=tp[w2])
        if pk:
            for k in range(4): Q("v_pk_add_f32 %s, %s, %s" % (v(A + 2 * k, 2), v(A + 2 * k, 2), v(RD + 8 * w2 + 2 * k, 2)))
        else:
            for k in range(8): Q("v_add_f32 %s, %s, %s" % (v(A + k), v(A + k), v(RD + 8 * w2 + k)))
    for k in range(8): Q("v_mul_f32 %s, %s, %s" % (v(A + 24 + k), f2h(-math.log2(math.e)), v(A + k)))
    for k in range(8):
        Q("v_exp_f32 %s, %s" % (v(A + 24 + k), v(A + 24 + k)))
    for k in range(4):
        Q("v_lshlrev_b32 %s, 16, %s" % (v(A + 8 + 2 * k), v(YA + k)))
        Q("v_and_b32 %s, 0xffff0000, %s" % (v(A + 8 + 2 * k + 1), v(YA + k)))
    for k in range(8): Q("v_add_f32 %s, 1.0, %s" % (v(A + 24 + k), v(A + 24 + k)))
    for k in range(8): Q("v_rcp_f32 %s, %s" % (v(A + 24 + k), v(A + 24 + k)))
    for k in range(4):
        Q("v_lshlrev_b32 %s, 16, %s" % (v(A + 16 + 2 * k), v(XFIN + 4 * mh + k)))
        Q("v_and_b32 %s, 0xffff0000, %s" % (v(A + 16 + 2 * k + 1), v(XFIN + 4 * mh + k)))
    for k in range(8): Q("v_mul_f32 %s, %s, %s" % (v(A + k), v(A + k), v(A + 24 + k)))
    for k in range(8): Q("v_fmac_f32 %s, %s, %s" % (v(A + 16 + k), v(A + k), v(A + 8 + k)))
    for k in range(4): Q("v_cvt_pk_bf16_f32 %s, %s, %s" % (v(A + k), v(A + 16 + 2 * k), v(A + 16 + 2 * k + 1)))
    Q("buffer_store_dwordx4 %s, v29, %s, %s offen%s" % (v(A, 4), SO, C(8 * mh), " sc1" if "--osc1" in sys.argv else ""))
    gs += [Q.ins[i:i + 4] for i in range(0, len(Q.ins), 4)]
    return gs
for n in range(28): P.extend(mf(n))
M = []
for n in range(28, 56): M += mf(n)
P.extend(weave(M, red_write(0) + fin(0, False), after=is_mfma, start=2))
stamp(P)
for g in red_write(1) + fin(1, True): P.extend(g)
stamp(P)
if STAMP:
    P("s_waitcnt vmcnt(0)")
    stamp(P)
    n = nstamp[0]
    if LEAK and LEAK[0] >= 100:
        P("s_load_dwordx2 s[4:5], s[0:1], 88")
        P("s_waitcnt lgkmcnt(0)")
        P("s_mov_b32 s8, s4"); P("s_mov_b32 s9, s5"); P("s_mov_b32 s10, 256")
        P("s_not_b32 %s, s%d" % (sT2, STAMP_S))
        if LEAK[0] < 108:
            P("s_and_b32 %s, s2, 7" % sT3)
            P("s_cmp_eq_u32 %s, %d" % (sT3, LEAK[0] - 100))
            P("s_cselect_b32 %s, %s, 0" % (sT2, sT2))
        P("v_mov_b32 v16, %s" % sT2)
        P("v_lshlrev_b32 v17, 8, v0")
        P("buffer_atomic_umax v16, v17, s[8:11], 0 offen sc1")
        P("s_waitcnt vmcnt(0)")
        P("s_add_u32 %s, s%d, 4500" % (sT2, STAMP_S))
        P("L_leak0:")
        P("s_memrealtime s[4:5]")
        P("s_waitcnt lgkmcnt(0)")
        P("s_sub_u32 %s, s4, %s" % (sT3, sT2))
        P("s_cmp_lt_i32 %s, 0" % sT3)
        P("s_cbranch_scc1 L_leak0")
        P("buffer_load_dword v16, v17, s[8:11], 0 offen sc1")
        P("s_waitcnt vmcnt(0)")
        P("v_readfirstlane_b32 %s, v16" % sT2)
        P("s_not_b32 %s, %s" % (sT2, sT2))
        P("s_add_u32 %s, %s, 6000" % (sT2, sT2))
    elif LEAK:
        P("s_add_u32 %s, s%d, 6000" % (sT2, STAMP_S + LEAK[0]))
    if LEAK:
        P("L_leak:")
        P("s_memrealtime s[4:5]")
        P("s_waitcnt lgkmcnt(0)")
        P("s_sub_u32 %s, s4, %s" % (sT3, sT2))
        P("s_cmp_lt_i32 %s, 0" % sT3)
        P("s_cbranch_scc1 L_leak")
    assert n <= 22
    for k in range(n):
        P("v_writelane_b32 v16, s%d, %d" % (STAMP_S + k, k))
    P("s_lshl_b32 %s, s2, 2" % sT2)
    P("s_add_u32 %s, %s, %s" % (sT2, sT2, sW))
    P("s_lshl_b32 %s, %s, 8" % (sT2, sT2))
    P("s_add_u32 %s, %s, %d" % (sT2, sT2, WS_STAMP))
    P("v_lshl_add_u32 v17, v0, 2, %s" % sT2)
    P("buffer_store_dword v16, v17, %s, 0 offen" % SWS)
P("L_end:")
P("s_endpgm")

import asmlib
_parse = asmlib.parse
def parse2(t):
    if t.startswith("/*rare*/"): t = t[9:]
    return _parse(t)
asmlib.parse = parse2
lines, nops = finalize(P.ins)
lines = [l[9:] if l.startswith("/*rare*/") else l for l in lines]

hdr = open("cdna_kernels/%s.s.ref" % NAME).read().split("; Override launch")[0]
txt = hdr + "; @launch grid=(256,1,1) block=(256,1,1) lds=%d\n" % LDS_BYTES
txt += """.amdgcn_target "amdgcn-amd-amdhsa--gfx950"
.text
.globl %s_kernel
.p2align 8
.type %s_kernel,@function
%s_kernel:
""" % (NAME, NAME, NAME)
txt += "\n".join(("" if l.endswith(":") else "  ") + l for l in lines) + "\n"
txt += """L_pad:
  .fill (65536 + 64 - (L_pad - L_pc)) / 4, 4, 0xbf800000
.section .rodata,"a"
.p2align 6
.amdhsa_kernel %s_kernel
  .amdhsa_next_free_vgpr 512
  .amdhsa_next_free_sgpr 102
  .amdhsa_accum_offset 256
  .amdhsa_group_segment_fixed_size 0
  .amdhsa_kernarg_size 104
  .amdhsa_user_sgpr_count 2
  .amdhsa_user_sgpr_kernarg_segment_ptr 1
  .amdhsa_system_sgpr_workgroup_id_x 1
.end_amdhsa_kernel
""" % NAME
open(OUT, "w").write(txt)
print("instructions:", sum(1 for l in lines if not l.endswith(":")), "nops inserted:", nops, "stamps:", nstamp[0])
```
